```python
import torch

def _softmax(x, axis=-1):
    return torch.softmax(x, dim=axis)
def _gelu(x):
    return torch.nn.functional.gelu(x, approximate="tanh")
def _silu(x):
    return torch.nn.functional.silu(x)
def _sigmoid(x):
    return torch.sigmoid(x)
def _layernorm(x, axis=-1, eps=1e-5):
    m = x.mean(dim=axis, keepdim=True)
    v = x.var(dim=axis, keepdim=True, unbiased=False)
    return (x - m) / torch.sqrt(v + eps)
def _scatter_add(tgt, idx, src, axis=0):
    return tgt.clone().index_add_(axis, idx, src)
def _segment_sum(src, seg, n):
    out = torch.zeros((n,) + src.shape[1:], dtype=src.dtype)
    return out.index_add_(0, seg, src)
def _pad(x, pw):
    flat = tuple(v for pair in reversed(pw) for v in pair)
    return torch.nn.functional.pad(x, flat)

kernel_name = 'parallel_sum__compressed_kv_cla__dense_activation_silu__decode'

def setup_inputs():

    _w = (lambda a: (lambda t: t.to(torch.bfloat16) if t.is_floating_point() else t)(torch.as_tensor(a)))
    def _A_setup():
        B, H, Sq, Sk, D, M = 2, 32, 1, 8192, 128, 576
        Dc = 4 * D
        return {
            "x": _w((lambda *s: torch.randn(*s, dtype=torch.bfloat16) * 0.05)(B, Sq, M)),
            "c_kv": _w((lambda *s: torch.randn(*s, dtype=torch.bfloat16) * 0.8)(B, Sk, Dc)),
            "w_q": _w((lambda *s: torch.randn(*s, dtype=torch.bfloat16) * 3.2)(M, H, D) * (M ** -0.5)),
            "w_uk": _w((lambda *s: torch.randn(*s, dtype=torch.bfloat16) * 3.2)(Dc, H, D) * (Dc ** -0.5)),
            "w_uv": _w((lambda *s: torch.randn(*s, dtype=torch.bfloat16) * 0.8)(Dc, H, D) * (Dc ** -0.5)),
            "w_o": _w((lambda *s: torch.randn(*s, dtype=torch.bfloat16) * 0.8)(H, D, M) * ((H * D) ** -0.5)),
        }
    _A_in = _A_setup()

    def _B_setup():
        B, S, D, F = 2, 1, 576, 4608
        return {
            "x": _w((lambda *s: torch.randn(*s, dtype=torch.bfloat16) * 0.05)(B, S, D)),
            "w1": _w((lambda *s: torch.randn(*s, dtype=torch.bfloat16) * 3.2)(D, F) * (D ** -0.5)),
            "w2": _w((lambda *s: torch.randn(*s, dtype=torch.bfloat16) * 0.2)(F, D) * (F ** -0.5)),
        }
    _B_in = _B_setup()

    return {
        "A_x": _A_in["x"],
        "A_c_kv": _A_in["c_kv"],
        "A_w_q": _A_in["w_q"],
        "A_w_uk": _A_in["w_uk"],
        "A_w_uv": _A_in["w_uv"],
        "A_w_o": _A_in["w_o"],
        "B_x": _B_in["x"],
        "B_w1": _B_in["w1"],
        "B_w2": _B_in["w2"],
    }

def reference(A_x, A_c_kv, A_w_q, A_w_uk, A_w_uv, A_w_o, B_x, B_w1, B_w2):
    def _A_ref(x, c_kv, w_q, w_uk, w_uv, w_o):
        B, Sq, M = x.shape[0], x.shape[1], x.shape[2]
        Sk = c_kv.shape[1]
        H, D = w_q.shape[1], w_q.shape[2]
        q = torch.einsum("bqm,mhd->bhqd", x, w_q)
        k = torch.einsum("bkc,chd->bhkd", c_kv, w_uk)
        v = torch.einsum("bkc,chd->bhkd", c_kv, w_uv)
        scores = torch.einsum("bhqd,bhkd->bhqk", q, k) * (D ** -0.5)
        off = Sk - Sq
        qi = torch.arange(Sq)[:, None]
        kj = torch.arange(Sk)[None, :]
        cmask = kj <= (qi + off)
        scores = torch.where(cmask[None, None], scores, -1e9)
        p = _softmax(scores, axis=-1)
        ctx = torch.einsum("bhqk,bhkd->bhqd", p, v)
        return torch.einsum("bhqd,hdm->bqm", ctx, w_o)

    def _B_ref(x, w1, w2):
        h = torch.einsum("bsd,df->bsf", x, w1)
        h = _silu(h)
        out = torch.einsum("bsf,fd->bsd", h, w2)
        return out

    x = A_x
    xn = _layernorm(x, axis=-1)
    return x + _A_ref(xn, A_c_kv, A_w_q, A_w_uk, A_w_uv, A_w_o) + _B_ref(xn, B_w1, B_w2)
```

```python
NAME = "parallel_sum__compressed_kv_cla__dense_activation_silu__decode"
import sys
HDR = open("cdna_kernels/"+NAME+".s.ref").read().split("; @launch")[0]
Q_OFF=0x2000; H_OFF=0x10000; QA_OFF=0x20000; CTX_OFF=0x40000; S_OFF=0x100000; P_OFF=0x400000; LAT_OFF=0x800000
L=[]; e=L.append
def kstart(name, nwg):
    e(f".globl {name}\n.p2align 8\n.type {name},@function\n{name}:")
    e(f"s_cmp_ge_u32 s2, {nwg}\ns_cbranch_scc1 {name}_end")
    e("s_load_dwordx16 s[4:19], s[0:1], 0\ns_load_dwordx8 s[20:27], s[0:1], 64")
    e("v_lshrrev_b32 v1, 6, v0\ns_nop 0\nv_readfirstlane_b32 s3, v1\nv_and_b32 v2, 63, v0")
    e("s_waitcnt lgkmcnt(0)")
def srd(d, p, size):
    e(f"s_mov_b32 s{d}, s{p}\ns_mov_b32 s{d+1}, s{p+1}\ns_mov_b32 s{d+2}, {size}\ns_mov_b32 s{d+3}, 0x20000")
def kend(name):
    e(f"{name}_end:\ns_endpgm")
def wavesum(v, t, op="v_add_f32"):
    for k in (1,2,4,8,16,32):
        e(f"v_xor_b32 v{t}, {k}, v2\nv_lshlrev_b32 v{t}, 2, v{t}\nds_bpermute_b32 v{t}, v{t}, v{v}\ns_waitcnt lgkmcnt(0)\n{op} v{v}, v{v}, v{t}")
def bfr(v):
    e(f"v_cvt_pk_bf16_f32 v{v}, v{v}, v{v}\nv_and_b32 v{v}, 0xffff0000, v{v}")

KS=[]
n="k1_kernel"; KS.append((n,34,256,8192)); kstart(n,34)
srd(28,4,2304); srd(32,26,0x10000000)
e("v_lshlrev_b32 v3, 1, v2")
for b in range(2):
    for i in range(9): e(f"buffer_load_ushort v{10+i}, v3, s[28:31], 0 offen offset:{b*1152+i*128}")
    e("s_waitcnt vmcnt(0)")
    for i in range(9): e(f"v_lshlrev_b32 v{10+i}, 16, v{10+i}")
    e("v_mov_b32 v20, v10")
    for i in range(1,9): e(f"v_add_f32 v20, v20, v{10+i}")
    wavesum(20,4)
    e(f"v_mul_f32 v20, {1/576:.12e}, v20")
    e("v_sub_f32 v22, v10, v20\nv_mul_f32 v21, v22, v22")
    for i in range(1,9): e(f"v_sub_f32 v22, v{10+i}, v20\nv_fmac_f32 v21, v22, v22")
    wavesum(21,4)
    e(f"v_mul_f32 v21, {1/576:.12e}, v21"); bfr(21)
    e("v_add_f32 v21, 0x3727c5ac, v21"); bfr(21)
    e("v_sqrt_f32 v21, v21\ns_nop 0"); bfr(21)
    e("v_rcp_f32 v21, v21"); bfr(20)
    e("v_lshlrev_b32 v5, 2, v2")
    for i in range(9):
        e(f"v_sub_f32 v22, v{10+i}, v20"); bfr(22); e("v_mul_f32 v22, v22, v21"); bfr(22)
        e(f"ds_write_b32 v5, v22 offset:{b*2304+i*256}")
e("s_waitcnt lgkmcnt(0)\ns_barrier")
e("s_cmp_lt_u32 s2, 16\ns_cbranch_scc0 k1_ffn")
srd(36,8,4718592); e("s_mov_b32 s40, 8192\ns_lshl_b32 s41, s2, 8\ns_branch k1_go")
e("k1_ffn:"); srd(36,18,5308416); e("s_mov_b32 s40, 9216\ns_sub_u32 s41, s2, 16\ns_lshl_b32 s41, s41, 8")
e("k1_go:\nv_add_u32 v3, s41, v0\nv_lshlrev_b32 v4, 1, v3\nv_mov_b32 v6, 0\nv_mov_b32 v7, 0\ns_mov_b32 s42, 0\ns_mov_b32 s43, 0\nv_mov_b32 v5, 0")
e("k1_loop:")
for u in range(8):
    e(f"buffer_load_ushort v{10+u}, v4, s[36:39], s43 offen\ns_add_u32 s43, s43, s40")
e("ds_read_b128 v[20:23], v5\nds_read_b128 v[24:27], v5 offset:16\nds_read_b128 v[28:31], v5 offset:2304\nds_read_b128 v[32:35], v5 offset:2320")
e("s_waitcnt vmcnt(0) lgkmcnt(0)")
for u in range(8):
    e(f"v_lshlrev_b32 v{10+u}, 16, v{10+u}\nv_fmac_f32 v6, v{10+u}, v{20+u}\nv_fmac_f32 v7, v{10+u}, v{28+u}")
e("v_add_u32 v5, 32, v5\ns_add_u32 s42, s42, 8\ns_cmp_lt_u32 s42, 576\ns_cbranch_scc1 k1_loop")
bfr(6); bfr(7)
e("v_lshlrev_b32 v4, 2, v3\ns_cmp_lt_u32 s2, 16\ns_cbranch_scc0 k1_silu")
e(f"s_mov_b32 s44, {Q_OFF}\ns_mov_b32 s45, {Q_OFF+16384}\ns_branch k1_st")
e("k1_silu:")
for v in (6,7):
    e(f"v_mul_f32 v8, 0xbfb8aa3b, v{v}\nv_exp_f32 v8, v8\ns_nop 0\nv_add_f32 v8, 1.0, v8\nv_rcp_f32 v8, v8\ns_nop 0\nv_mul_f32 v{v}, v{v}, v8"); bfr(v)
e(f"s_mov_b32 s44, {H_OFF}\ns_mov_b32 s45, {H_OFF+4608*4}")
e("k1_st:\nbuffer_store_dword v6, v4, s[32:35], s44 offen\nbuffer_store_dword v7, v4, s[32:35], s45 offen")
kend(n)
n="k2_kernel"; KS.append((n,64,256,0)); kstart(n,64)
srd(28,10,4194304); srd(32,26,0x10000000)
e("s_lshl_b32 s41, s2, 8\nv_add_u32 v3, s41, v0\nv_lshlrev_b32 v4, 8, v3\nv_and_b32 v5, 31, v3\nv_lshlrev_b32 v8, 9, v5\nv_mov_b32 v6, 0\nv_mov_b32 v7, 0")
for i in range(16):
    e(f"buffer_load_dwordx4 v[10:13], v4, s[28:31], 0 offen offset:{i*16}")
    e(f"s_mov_b32 s44, {Q_OFF}\ns_mov_b32 s45, {Q_OFF+16384}")
    for b in range(2):
        e(f"buffer_load_dwordx4 v[{20+8*b}:{23+8*b}], v8, s[32:35], s{44+b} offen offset:{i*32}\nbuffer_load_dwordx4 v[{24+8*b}:{27+8*b}], v8, s[32:35], s{44+b} offen offset:{i*32+16}")
    e("s_waitcnt vmcnt(0)")
    for k in range(4):
        e(f"v_lshlrev_b32 v14, 16, v{10+k}\nv_and_b32 v15, 0xffff0000, v{10+k}")
        e(f"v_fmac_f32 v6, v14, v{20+2*k}\nv_fmac_f32 v7, v14, v{28+2*k}\nv_fmac_f32 v6, v15, v{21+2*k}\nv_fmac_f32 v7, v15, v{29+2*k}")
import struct
def f2h(x): return hex(struct.unpack("<I",struct.pack("<f",x))[0])
sc = f2h(128**-0.5*1.4426950408889634)
e(f"v_mul_f32 v6, {sc}, v6\nv_mul_f32 v7, {sc}, v7"); bfr(6); bfr(7)
e("v_lshrrev_b32 v9, 5, v3\nv_lshrrev_b32 v10, 3, v9\nv_lshlrev_b32 v10, 5, v10\nv_add_u32 v10, v10, v5\nv_lshlrev_b32 v10, 5, v10\nv_and_b32 v9, 7, v9\nv_lshlrev_b32 v9, 2, v9\nv_add_u32 v10, v10, v9")
e(f"s_mov_b32 s44, {QA_OFF}\ns_mov_b32 s45, {QA_OFF+65536}")
e("buffer_store_dword v6, v10, s[32:35], s44 offen\nbuffer_store_dword v7, v10, s[32:35], s45 offen")
kend(n)
n="k3_kernel"; KS.append((n,256,64,0)); kstart(n,256)
srd(28,6,16<<20); srd(32,26,0x10000000)
e("s_lshl_b32 s41, s2, 6\nv_add_u32 v3, s41, v0\nv_lshlrev_b32 v4, 10, v3")
e(f"s_lshr_b32 s42, s2, 7\ns_lshl_b32 s42, s42, 16\ns_add_u32 s42, s42, {QA_OFF}\ns_add_u32 s46, s26, s42\ns_addc_u32 s47, s27, 0")
for h in range(32): e(f"v_mov_b32 v{32+h}, 0")
e("s_mov_b32 s43, 0\nk3_loop:\nbuffer_load_dwordx4 v[10:13], v4, s[28:31], s43 offen\ns_waitcnt vmcnt(0)")
for k in range(4): e(f"v_lshlrev_b32 v{16+2*k}, 16, v{10+k}\nv_and_b32 v{17+2*k}, 0xffff0000, v{10+k}")
for g in range(8):
    e(f"s_load_dwordx16 s[48:63], s[46:47], {g*128}\ns_load_dwordx16 s[64:79], s[46:47], {g*128+64}\ns_waitcnt lgkmcnt(0)")
    for hh in range(4):
        for k in range(8): e(f"v_fmac_f32 v{32+g*4+hh}, s{48+hh*8+k}, v{16+k}")
e("s_add_u32 s46, s46, 1024\ns_addc_u32 s47, s47, 0\ns_add_u32 s43, s43, 16\ns_cmp_lt_u32 s43, 1024\ns_cbranch_scc1 k3_loop")
e(f"s_lshr_b32 s42, s2, 7\ns_lshl_b32 s42, s42, 20\ns_add_u32 s42, s42, {S_OFF}\nv_and_b32 v4, 8191, v3\nv_lshlrev_b32 v4, 2, v4")
for h in range(32): e(f"buffer_store_dword v{32+h}, v4, s[32:35], s42 offen\ns_add_u32 s42, s42, 32768")
kend(n)
n="k4_kernel"; KS.append((n,64,64,0)); kstart(n,64)
srd(32,26,0x10000000)
e(f"s_lshl_b32 s42, s2, 15\ns_add_u32 s42, s42, {S_OFF}\nv_lshlrev_b32 v4, 4, v2")
for i in range(32): e(f"buffer_load_dwordx4 v[{16+4*i}:{19+4*i}], v4, s[32:35], s42 offen\ns_add_u32 s42, s42, 1024")
e("s_waitcnt vmcnt(0)\nv_mov_b32 v6, v16")
for i in range(1,128): e(f"v_max_f32 v6, v6, v{16+i}")
wavesum(6,5,"v_max_f32")
e("v_mov_b32 v7, 0")
for i in range(128): e(f"v_sub_f32 v{16+i}, v{16+i}, v6\nv_exp_f32 v{16+i}, v{16+i}\ns_nop 0\nv_add_f32 v7, v7, v{16+i}")
wavesum(7,5)
e("v_rcp_f32 v7, v7")
e(f"s_lshr_b32 s42, s2, 5\ns_lshl_b32 s42, s42, 20\ns_and_b32 s43, s2, 31\ns_lshl_b32 s43, s43, 2\ns_add_u32 s42, s42, s43\ns_add_u32 s42, s42, {P_OFF}\nv_lshlrev_b32 v4, 9, v2")
for i in range(32):
    for r in range(4):
        v=16+4*i+r
        e(f"v_mul_f32 v{v}, v{v}, v7"); bfr(v)
        e(f"buffer_store_dword v{v}, v4, s[32:35], s42 offen offset:{r*128}")
    e("s_add_u32 s42, s42, 32768")
kend(n)
n="k5_kernel"; KS.append((n,128,256,0)); kstart(n,128)
srd(28,6,16<<20); srd(32,26,0x10000000)
e("v_lshlrev_b32 v4, 2, v0\ns_lshl_b32 s43, s2, 17")
e(f"s_lshl_b32 s42, s2, 14\ns_add_u32 s42, s42, {P_OFF}\ns_add_u32 s46, s26, s42\ns_addc_u32 s47, s27, 0")
for h in range(64): e(f"v_mov_b32 v{32+h}, 0")
e("s_mov_b32 s41, 0\nk5_loop:\nbuffer_load_dword v10, v4, s[28:31], s43 offen\ns_load_dwordx16 s[48:63], s[46:47], 0\ns_load_dwordx16 s[64:79], s[46:47], 64\ns_waitcnt vmcnt(0) lgkmcnt(0)")
e("v_lshlrev_b32 v16, 16, v10\nv_and_b32 v17, 0xffff0000, v10")
for h in range(32): e(f"v_fmac_f32 v{32+2*h}, s{48+h}, v16\nv_fmac_f32 v{33+2*h}, s{48+h}, v17")
e("s_add_u32 s46, s46, 128\ns_addc_u32 s47, s47, 0\ns_add_u32 s43, s43, 1024\ns_add_u32 s41, s41, 1\ns_cmp_lt_u32 s41, 128\ns_cbranch_scc1 k5_loop")
e(f"s_lshl_b32 s42, s2, 16\ns_add_u32 s42, s42, {LAT_OFF}\nv_lshlrev_b32 v4, 3, v0")
for h in range(32): e(f"buffer_store_dwordx2 v[{32+2*h}:{33+2*h}], v4, s[32:35], s42 offen\ns_add_u32 s42, s42, 2048")
kend(n)
n="k6_kernel"; KS.append((n,32,256,4096)); kstart(n,32)
srd(28,12,4194304); srd(32,26,0x10000000)
e(f"v_lshrrev_b32 v3, 7, v0\nv_lshlrev_b32 v4, 22, v3\nv_and_b32 v5, 127, v0\nv_lshlrev_b32 v6, 4, v5\nv_add_u32 v4, v4, v6\ns_lshl_b32 s42, s2, 11\ns_add_u32 s42, s42, {LAT_OFF}")
for k in range(4): e(f"v_mov_b32 v{10+k}, 0")
for g in range(4):
    for i in range(16): e(f"buffer_load_dwordx4 v[{16+4*i}:{19+4*i}], v4, s[32:35], s42 offen\ns_add_u32 s42, s42, 65536")
    e("s_waitcnt vmcnt(0)")
    for i in range(16):
        for k in range(4): e(f"v_add_f32 v{10+k}, v{10+k}, v{16+4*i+k}")
for k in range(4): bfr(10+k)
e("v_lshlrev_b32 v6, 4, v0\nds_write_b128 v6, v[10:13]\ns_waitcnt lgkmcnt(0)\ns_barrier")
e("v_lshlrev_b32 v4, 1, v5\nv_lshlrev_b32 v6, 11, v3\nv_mov_b32 v7, 0\ns_lshl_b32 s43, s2, 8\ns_mov_b32 s41, 0\nk6_loop:")
for u in range(8): e(f"buffer_load_ushort v{16+u}, v4, s[28:31], s43 offen\ns_add_u32 s43, s43, 8192")
e("ds_read_b128 v[24:27], v6\nds_read_b128 v[28:31], v6 offset:16\ns_waitcnt vmcnt(0) lgkmcnt(0)")
for u in range(8): e(f"v_lshlrev_b32 v{16+u}, 16, v{16+u}\nv_fmac_f32 v7, v{16+u}, v{24+u}")
e("v_add_u32 v6, 32, v6\ns_add_u32 s41, s41, 8\ns_cmp_lt_u32 s41, 512\ns_cbranch_scc1 k6_loop")
bfr(7)
e(f"v_lshlrev_b32 v4, 14, v3\nv_lshlrev_b32 v5, 2, v5\nv_add_u32 v4, v4, v5\ns_lshl_b32 s42, s2, 9\ns_add_u32 s42, s42, {CTX_OFF}\nbuffer_store_dword v7, v4, s[32:35], s42 offen")
kend(n)
n="k7_kernel"; KS.append((n,9,256,4096)); kstart(n,9)
e("s_lshl_b32 s41, s2, 6\nv_add_u32 v3, s41, v2\nv_lshlrev_b32 v4, 1, v3")
e("s_cmp_lt_u32 s3, 2\ns_cbranch_scc0 k7_b")
srd(28,14,4718592); e(f"s_mul_i32 s43, s3, {2048*1152}\ns_lshl_b32 s42, s3, 13\ns_add_u32 s42, s42, {CTX_OFF}\ns_add_u32 s44, s42, 16384\ns_mov_b32 s40, 2048\ns_branch k7_go")
e("k7_b:"); srd(28,20,5308416); e(f"s_sub_u32 s42, s3, 2\ns_mul_i32 s43, s42, {2304*1152}\ns_mul_i32 s42, s42, {2304*4}\ns_add_u32 s42, s42, {H_OFF}\ns_add_u32 s44, s42, {4608*4}\ns_mov_b32 s40, 2304")
e("k7_go:\ns_add_u32 s46, s26, s42\ns_addc_u32 s47, s27, 0\ns_add_u32 s44, s26, s44\ns_addc_u32 s45, s27, 0\nv_mov_b32 v6, 0\nv_mov_b32 v7, 0\ns_mov_b32 s41, 0\nk7_loop:")
for u in range(16): e(f"buffer_load_ushort v{16+u}, v4, s[28:31], s43 offen\ns_add_u32 s43, s43, 1152")
e("s_load_dwordx16 s[48:63], s[46:47], 0\ns_load_dwordx16 s[64:79], s[44:45], 0\ns_waitcnt vmcnt(0) lgkmcnt(0)")
for u in range(16): e(f"v_lshlrev_b32 v{16+u}, 16, v{16+u}\nv_fmac_f32 v6, s{48+u}, v{16+u}\nv_fmac_f32 v7, s{64+u}, v{16+u}")
e("s_add_u32 s46, s46, 64\ns_addc_u32 s47, s47, 0\ns_add_u32 s44, s44, 64\ns_addc_u32 s45, s45, 0\ns_add_u32 s41, s41, 16\ns_cmp_lt_u32 s41, s40\ns_cbranch_scc1 k7_loop")
e("v_lshlrev_b32 v5, 3, v0\nds_write_b64 v5, v[6:7]\ns_waitcnt lgkmcnt(0)\ns_barrier\ns_cmp_lg_u32 s3, 0\ns_cbranch_scc1 k7_kernel_end")
srd(28,4,2304); srd(32,22,2304)
e("buffer_load_ushort v8, v4, s[28:31], 0 offen\nbuffer_load_ushort v9, v4, s[28:31], 0 offen offset:1152")
e("ds_read_b64 v[10:11], v5\nds_read_b64 v[12:13], v5 offset:512\nds_read_b64 v[14:15], v5 offset:1024\nds_read_b64 v[16:17], v5 offset:1536\ns_waitcnt vmcnt(0) lgkmcnt(0)")
for b in range(2):
    e(f"v_lshlrev_b32 v{8+b}, 16, v{8+b}\nv_add_f32 v{10+b}, v{10+b}, v{12+b}\nv_add_f32 v{14+b}, v{14+b}, v{16+b}")
    bfr(10+b); bfr(14+b)
    e(f"v_add_f32 v{8+b}, v{8+b}, v{10+b}"); bfr(8+b); e(f"v_add_f32 v{8+b}, v{8+b}, v{14+b}")
    e(f"v_cvt_pk_bf16_f32 v{8+b}, v{8+b}, v{8+b}\nbuffer_store_short v{8+b}, v4, s[32:35], 0 offen offset:{b*1152}")
kend(n)

out = HDR
for (n,g,b,l) in KS: out += f"; @launch kernel={n} grid=({g},1,1) block=({b},1,1) lds={l}\n"
out += '.amdgcn_target "amdgcn-amd-amdhsa--gfx950"\n.text\n' + "\n".join(L) + "\n"
out += '.section .rodata,"a"\n'
for (n,g,b,l) in KS:
    out += f""".p2align 6
.amdhsa_kernel {n}
  .amdhsa_next_free_vgpr 256
  .amdhsa_next_free_sgpr 102
  .amdhsa_accum_offset 256
  .amdhsa_group_segment_fixed_size 0
  .amdhsa_kernarg_size 96
  .amdhsa_user_sgpr_count 2
  .amdhsa_user_sgpr_kernarg_segment_ptr 1
  .amdhsa_system_sgpr_workgroup_id_x 1
.end_amdhsa_kernel
"""
open(sys.argv[1],"w").write(out)
import chk
print(chk.check(out))
```

```python
import re, subprocess, os

def vr(a, n=1): return f"v{a}" if n == 1 else f"v[{a}:{a+n-1}]"
def sr(a, n=1): return f"s{a}" if n == 1 else f"s[{a}:{a+n-1}]"

_reg = re.compile(r"^(-|\|)?(v|s|a)(\d+)\|?$|^(-|\|)?(v|s|a)\[(\d+):(\d+)\]\|?$")
def regs(tok):
    tok = tok.strip()
    if tok in ("vcc",): return {("s", 106), ("s", 107)}
    if tok == "vcc_lo": return {("s", 106)}
    if tok == "vcc_hi": return {("s", 107)}
    if tok == "exec": return {("s", 126), ("s", 127)}
    if tok == "exec_lo": return {("s", 126)}
    if tok == "exec_hi": return {("s", 127)}
    if tok == "m0": return {("s", 124)}
    m = _reg.match(tok)
    if not m: return set()
    if m.group(2): return {(m.group(2), int(m.group(3)))}
    return {(m.group(5), i) for i in range(int(m.group(6)), int(m.group(7)) + 1)}

TRANS = ("v_exp_f32", "v_log_f32", "v_rcp_f32", "v_rsq_f32", "v_sqrt_f32", "v_sin_f32", "v_cos_f32")
EXEC = {("s", 126), ("s", 127)}; VCC = {("s", 106), ("s", 107)}

class Ins:
    def __init__(self, text):
        self.text = text
        t = text.split(";")[0].strip()
        self.label = t[:-1] if t.endswith(":") else None
        self.directive = t.startswith(".")
        self.empty = (t == "")
        self.w = set(); self.r = set(); self.kind = None
        self.A = self.B = self.C = set(); self.data = set(); self.dst = set()
        self.target = None; self.uncond = False; self.states = 1
        self.dpp = self.perm = self.rdl = self.trans = self.ldsdma = self.widestore = False
        self.sconst = set()
        if self.label or self.directive or self.empty:
            self.states = 0; return
        parts = t.split(None, 1)
        mn = self.mn = parts[0]
        rest = parts[1] if len(parts) > 1 else ""
        ops = []; cur = ""; d = 0
        for ch in rest:
            if ch == "[": d += 1
            if ch == "]": d -= 1
            if ch == "," and d == 0: ops.append(cur.strip()); cur = ""
            else: cur += ch
        if cur.strip(): ops.append(cur.strip())
        mods = ""
        if ops:
            last = ops[-1].split(None, 1)
            ops[-1] = last[0]; mods = last[1] if len(last) > 1 else ""
        self.ops = ops; self.mods = mods
        R = [regs(o) for o in ops]
        U = lambda xs: set().union(*xs) if xs else set()
        if mn.startswith("v_mfma"):
            self.kind = "mfma"; self.w = R[0]; self.A = R[1]; self.B = R[2]; self.C = R[3]; self.r = R[1] | R[2] | R[3]
        elif mn.startswith("v_"):
            self.kind = "valu"
            self.trans = mn.replace("_e32", "").replace("_e64", "") in TRANS
            self.dpp = "_dpp" in mn
            if mn.startswith("v_cmpx"):
                self.w = R[0] | EXEC; self.r = U(R[1:])
            elif mn.startswith("v_permlane") or mn.startswith("v_swap"):
                self.perm = mn.startswith("v_permlane"); self.w = R[0] | R[1]; self.r = R[0] | R[1]
            elif mn.startswith("v_readfirstlane") or mn.startswith("v_readlane"):
                self.rdl = True; self.w = R[0]; self.r = U(R[1:])
            elif "_co_" in mn:
                self.w = R[0] | R[1]; self.r = U(R[2:])
            else:
                self.w = R[0]; self.r = U(R[1:])
                if mn.startswith(("v_fmac", "v_mac", "v_pk_fmac", "v_writelane")) or self.dpp: self.r |= R[0]
                if mn.startswith("v_cndmask") and len(ops) == 3: self.r |= VCC
            self.sconst = {x for x in self.r if x[0] == "s"}
        elif mn.startswith("ds_"):
            self.kind = "ds"
            if mn.startswith(("ds_read", "ds_bpermute", "ds_permute", "ds_swizzle")) or "_rtn" in mn:
                self.w = R[0]; self.dst = R[0]; self.r = U(R[1:])
            else: self.r = U(R)
        elif mn.startswith(("buffer_", "global_")):
            self.kind = "vmem"
            if mn.startswith(("buffer_wbl2", "buffer_inv")): pass
            elif "load" in mn:
                if re.search(r"\blds\b", mods) or "load_lds" in mn:
                    self.ldsdma = True; self.r = U(R) | {("s", 124)}
                else:
                    self.w = R[0]; self.dst = R[0]; self.r = U(R[1:])
            else:
                self.r = U(R)
                if mn.startswith("buffer_"): self.data = R[0]
                else: self.data = R[1]
                self.widestore = ("x3" in mn or "x4" in mn)
        elif mn.startswith("s_"):
            self.kind = "salu"
            if mn == "s_nop": self.states = int(ops[0], 0) + 1
            elif mn.startswith("s_cbranch") or mn == "s_branch":
                self.target = ops[0]; self.uncond = (mn == "s_branch")
            elif mn == "s_endpgm": self.uncond = True
            elif mn.startswith(("s_cmp", "s_waitcnt", "s_barrier", "s_setprio", "s_sleep", "s_bitcmp")): self.r = U(R)
            elif mn.startswith(("s_load", "s_memtime", "s_memrealtime")):
                self.kind = "smem"; self.w = R[0]; self.r = U(R[1:])
            else:
                self.w = R[0]; self.r = U(R[1:])
                if "saveexec" in mn: self.w |= EXEC
        else:
            raise ValueError("unknown instruction: " + text)

def need(p, c):
    n = 0
    vw = {x for x in p.w if x[0] in "va"}
    sw = {x for x in p.w if x[0] == "s"}
    if p.kind == "valu":
        if vw & c.r:
            if c.kind == "valu" and (c.dpp or c.perm): n = max(n, 2)
            if c.kind == "valu" and c.rdl: n = max(n, 1)
            if c.kind == "mfma": n = max(n, 2)
            if p.trans and c.kind == "valu": n = max(n, 1)
        if sw - EXEC:
            s2 = sw - EXEC
            if c.kind == "valu" and (s2 & c.sconst): n = max(n, 4 if c.rdl or c.mn.startswith("v_writelane") else 2)
            if c.kind == "vmem" and (s2 & c.r): n = max(n, 5)
        if sw & EXEC:
            if c.kind == "valu" and (c.perm or c.rdl): n = max(n, 4)
            if c.kind == "valu" and c.dpp: n = max(n, 5)
            if c.kind == "mfma": n = max(n, 4)
            if c.kind == "valu" and (c.sconst & EXEC): n = max(n, 2)
    if p.kind == "mfma":
        if c.kind == "mfma":
            if p.w & (c.A | c.B): n = max(n, 8)
            if p.w & c.C:
                if not (p.w == c.C and p.mn == c.mn): n = max(n, 6)
        elif c.kind in ("valu",):
            if p.w & (c.r | c.w): n = max(n, 8)
            if p.C & c.w: n = max(n, 3)
        elif c.kind in ("ds", "vmem"):
            if p.w & (c.r | c.w): n = max(n, 8)
    if p.kind == "vmem" and p.widestore:
        if p.data & c.w: n = max(n, 2 if c.kind in ("valu", "mfma") else 1)
    if p.kind == "salu" and (("s", 124) in p.w) and c.ldsdma: n = max(n, 1)
    return n

MAXD = 9
def pad_hazards(lines):
    ins = [Ins(l) for l in lines]
    out = []
    def build(ins):
        lab = {x.label: i for i, x in enumerate(ins) if x.label}
        preds = {i: [] for i in range(len(ins))}
        for i, x in enumerate(ins):
            if x.target is not None and x.target in lab: preds[lab[x.target]].append(i)
            if i + 1 < len(ins) and not x.uncond: preds[i + 1].append(i)
        return preds
    changed = True; it = 0
    while changed:
        changed = False; it += 1
        preds = build(ins)
        i = 0
        new = []
        for i, c in enumerate(ins):
            if c.states and c.kind in ("valu", "mfma", "ds", "vmem"):
                req = 0
                stack = [(p, 0) for p in preds[i]]; seen = {}
                while stack:
                    j, d = stack.pop()
                    if j in seen and seen[j] <= d: continue
                    seen[j] = d
                    p = ins[j]
                    if p.states and p.kind:
                        req = max(req, need(p, c) - d)
                    d2 = d + p.states
                    if d2 < MAXD:
                        stack.extend((q, d2) for q in preds[j])
                if req > 0:
                    new.append(Ins(f"s_nop {req-1}")); changed = True
            new.append(c)
        ins = new
        if it > 20: raise RuntimeError("hazard padding did not converge")
    return [x.text for x in ins]

def sizes_of(lines, head, tail):
    src = head + "\n".join(lines) + "\n" + tail
    open("_sz.s", "w").write(src)
    r = subprocess.run(["clang", "-x", "assembler", "-target", "amdgcn-amd-amdhsa", "-mcpu=gfx950", "-c", "_sz.s", "-o", "_sz.o"], capture_output=True, text=True)
    if r.returncode: print(r.stderr[:3000]); raise SystemExit(1)
    d = subprocess.run(["llvm-objdump", "-d", "_sz.o"], capture_output=True, text=True).stdout
    sz = []
    for l in d.splitlines():
        m = re.search(r"// ([0-9A-F]{12}): ((?:[0-9A-F]{8} ?)+)", l)
        if m: sz.append(4 * len(m.group(2).split()))
    res = []; k = 0
    for l in lines:
        x = Ins(l)
        if x.states == 0: res.append(0)
        else: res.append(sz[k]); k += 1
    assert k == len(sz), (k, len(sz))
    return res

class Asm:
    def __init__(self): self.L = []; self.uid = 0
    def __call__(self, s):
        for l in s.split("\n"):
            l = l.strip()
            if l: self.L.append(l)
    def lab(self, p="L"):
        self.uid += 1; return f"{p}_{self.uid}"

def interleave(main, side, start=0, every=1, per=1):
    out = []; k = 0
    for i, m in enumerate(main):
        out.append(m)
        if i >= start and (i - start) % every == 0:
            out.extend(side[k:k + per]); k += per
    out.extend(side[k:])
    return out
```

```python
import sys, struct
sys.path.insert(0, "work")
from asmlib import *
NAME = "parallel_sum__compressed_kv_cla__dense_activation_silu__decode"
def f2h(x): return hex(struct.unpack("<I", struct.pack("<f", x))[0])

WS_EPOCH = 0; WS_S1 = 0x10000; WS_S2 = 0x60000; WS_MM = 0x90000; WS_ML = 0x98000; WS_S4 = 0xA0000
WS_S5 = 0x100000; WS_S3 = 0x200000; WS_TS = 0x800000; WS_SIZE = 0x900000
L_CKV = 0; L_WUV = 0; L_W1 = 16384; L_W2 = 53248; L_WO = 90112
L_WQ = 131072; L_QA = 131072; L_XN = 151552; L_QB = 153856; L_PB = 153856; L_MX = 157952; L_LB = 158208
L_FL = 159360; L_DUM = 159424; LDS_BYTES = 159744

DEF = dict(win=12, ts=0, stop=99, clean_after=2, pads=1, padstep=512, dbg=0)

def gen(**kw):
    cfg = dict(DEF); cfg.update(kw)
    W = cfg["win"]; TS = cfg["ts"]; STOP = cfg["stop"]
    a = Asm(); e = a
    sX, sS, sJ, sHH, sH, sHGT, sHGA, sB, sSPLIT, sHL, sSPIN, sT0 = range(52, 64)
    sT1, sT2, sT3, sT4, sT5, sT6, sT7 = range(4, 11)
    sM0, sM1 = 12, 14
    sHI = 16
    sC0, sC1 = 17, 18
    def ts(i):
        if TS: e(f"s_memrealtime s[{64+2*i}:{65+2*i}]")
    def srd(d, p, size, add=None):
        if add is None: e(f"s_mov_b32 s{d}, s{p}\ns_mov_b32 s{d+1}, s{p+1}")
        else: e(f"s_add_u32 s{d}, s{p}, s{add}\ns_addc_u32 s{d+1}, s{p+1}, 0")
        e(f"s_mov_b32 s{d+2}, {hex(size)}\ns_mov_b32 s{d+3}, 0x20000")
    def setexec(m):
        lo = m & 0xffffffff; hi = m >> 32
        if m == (1 << 64) - 1: e("s_mov_b64 exec, -1")
        elif hi == 0: e(f"s_mov_b64 exec, {hex(lo)}" if lo < 0x80000000 else f"s_mov_b32 exec_lo, {hex(lo)}\ns_mov_b32 exec_hi, 0")
        else: e(f"s_mov_b32 exec_lo, {hex(lo)}\ns_mov_b32 exec_hi, {hex(hi)}")
    def setmask(s, m):
        lo = m & 0xffffffff; hi = m >> 32
        e(f"s_mov_b32 s{s}, {hex(lo)}")
        e(f"s_mov_b32 s{s+1}, s{s}" if hi == lo else f"s_mov_b32 s{s+1}, {hex(hi)}")
    rep16 = lambda m: m * 0x0001000100010001
    fails = []
    def spin_check(code):
        if cfg["dbg"]:
            l = f"L_fail{code}"; fails.append(code)
        else: l = "L_end"
        e(f"s_sub_u32 s{sSPIN}, s{sSPIN}, 1\ns_cbranch_scc1 {l}")
    nopad_on = lambda: e("; NOPAD_ON")
    nopad_off = lambda: e("; NOPAD_OFF")
    vLANE, vG, vN, vTAG, vFW, vFR, vMW, vML, vTHR, vFV, vL16 = range(0, 11)
    def setflag(val): e(f"v_mov_b32 v{vFV}, {val}\nds_write_b32 v{vFW}, v{vFV}")
    def thr(stage, land):
        e(f"v_and_b32 v{vTHR}, {stage}, v{vMW}")
        if land not in (0, "0"): e(f"v_and_or_b32 v{vTHR}, v{vML}, {land}, v{vTHR}")
    def waitflags(code):
        l = a.lab("L_wf")
        e(f"{l}:\nds_read_b32 v{vFV}, v{vFR}\ns_waitcnt lgkmcnt(0)\nv_cmp_gt_u32 vcc, v{vTHR}, v{vFV}")
        spin_check(code)
        e(f"s_cbranch_vccnz {l}")
    def check_regs(rs, kind):
        nopad_on()
        for r in rs:
            e(f"v_cmpx_eq_u32 vcc, v{r}, v{vTAG}" if kind == "tag" else f"v_cmpx_ne_u32 vcc, -1, v{r}")
        e("s_cmp_eq_u64 exec, -1\ns_mov_b64 exec, -1")
        nopad_off()
    def dpp(op, d, s0, s1, ctl): e(f"{op}_dpp v{d}, v{s0}, v{s1} {ctl} row_mask:0xf bank_mask:0xf")
    QP1 = "quad_perm:[1,0,3,2]"; QP2 = "quad_perm:[2,3,0,1]"
    def mfma32(d, A, B, C=None): e(f"v_mfma_f32_16x16x32_bf16 {vr(d,4)}, {vr(A,4)}, {vr(B,4)}, {vr(C,4) if C is not None else 0}")
    def mfma16(d, A, B, C=None): e(f"v_mfma_f32_16x16x16_bf16 {vr(d,4)}, {vr(A,2)}, {vr(B,2)}, {vr(C,4) if C is not None else 0}")
    def cvtpk(d, x, y): e(f"v_cvt_pk_bf16_f32 v{d}, v{x}, v{y}")

    order = []
    for gidx in range(8):
        if gidx == cfg["clean_after"]: order.append("CLEAN")
        order.append(f"G{gidx}")
    if cfg["clean_after"] >= 8: order.append("CLEAN")
    order += ["WUV", "W1", "W2", "WO"]
    MS = {k: i + 1 for i, k in enumerate(order)}

    ts(0)
    e("s_cmp_ge_u32 s2, 256\ns_cbranch_scc1 L_end")
    e("s_load_dwordx16 s[4:19], s[0:1], 0\ns_load_dwordx8 s[20:27], s[0:1], 64")
    e(f"v_lshrrev_b32 v1, 6, v0\nv_and_b32 v0, 63, v0\nv_readfirstlane_b32 s3, v1")
    e(f"s_and_b32 s{sX}, s2, 7\ns_lshr_b32 s{sS}, s2, 3\ns_and_b32 s{sJ}, s{sS}, 7\ns_bfe_u32 s{sHGT}, s2, 0x10006\ns_lshr_b32 s{sHH}, s2, 7")
    e(f"s_lshl1_add_u32 s{sHL}, s{sX}, s{sHH}\ns_lshl4_add_u32 s{sH}, s{sHGT}, s{sHL}\ns_xor_b32 s{sHGA}, s{sHGT}, 1\ns_lshr_b32 s{sB}, s{sX}, 2")
    e(f"s_and_b32 s{sT0}, s{sX}, 3\ns_lshl1_add_u32 s{sT0}, s{sT0}, s{sHH}\ns_lshl3_add_u32 s{sSPLIT}, s{sT0}, s{sJ}")
    e(f"s_mov_b32 s{sSPIN}, 0x40000")
    e(f"v_lshlrev_b32 v{vL16}, 4, v0\nv_lshrrev_b32 v{vG}, 4, v0\nv_and_b32 v{vN}, 15, v0")
    e(f"s_lshl_b32 s{sT0}, s3, 2\ns_add_u32 s{sT0}, s{sT0}, {L_FL}\nv_lshlrev_b32 v{vFW}, 2, v0\nv_add_u32 v{vFW}, {L_DUM}, v{vFW}\nv_writelane_b32 v{vFW}, s{sT0}, 0")
    e(f"v_and_b32 v{vFV}, 7, v0\nv_lshlrev_b32 v{vFR}, 2, v{vFV}\nv_add_u32 v{vFR}, {L_FL}, v{vFR}")
    e(f"v_cmp_gt_u32 vcc, 4, v{vFV}\nv_cndmask_b32 v{vMW}, 0, -1, vcc\nv_cmp_eq_u32 vcc, 4, v{vFV}\nv_cndmask_b32 v{vML}, 0, -1, vcc")
    setflag(0)
    e("s_cmp_eq_u32 s3, 4\ns_cbranch_scc1 L_loader")

    sWV = 3
    vXO = 11
    e(f"v_lshrrev_b32 v12, 5, v0\nv_and_b32 v13, 31, v0\nv_mul_u32_u24 v12, 0x480, v12\nv_mad_u32_u24 v{vXO}, v13, 36, v12")
    e("v_lshrrev_b32 v12, 2, v0\nv_lshlrev_b32 v14, 13, v12\nv_lshrrev_b32 v12, 4, v0\nv_and_b32 v12, 2, v12\nv_and_b32 v13, 3, v0\nv_xor_b32 v12, v12, v13\nv_lshl_add_u32 v14, v12, 4, v14")
    e(f"v_lshlrev_b32 v15, 13, v{vN}\nv_lshl_add_u32 v15, v{vG}, 4, v15")
    e(f"s_lshl3_add_u32 s{sT0}, s{sH}, s{sJ}")
    e(f"s_lshl_b32 s28, s{sT0}, 10\ns_lshl_b32 s29, s3, 8\ns_add_u32 s28, s28, s29\ns_add_u32 s28, s28, {WS_S4}\nv_add_u32 v16, s28, v{vL16}")
    e(f"s_lshl_b32 s28, s{sT0}, 6\ns_lshl4_add_u32 s28, s3, s28\ns_add_u32 s29, s28, {WS_MM}\ns_add_u32 s28, s28, {WS_ML}\nv_writelane_b32 v16, s29, 16\nv_writelane_b32 v16, s28, 17")
    for i in range(4): e(f"v_mov_b32 v{28+i}, -1")
    e(f"s_mul_i32 s96, s{sJ}, {72*8192}\ns_lshl_b32 s97, s{sH}, 8\ns_add_u32 s96, s96, s97\ns_lshl_b32 s98, s3, 6\ns_add_u32 s96, s96, s98")
    e(f"s_lshl2_add_u32 s98, s{sJ}, s3\ns_lshl_b32 s98, s98, 17\ns_add_u32 s97, s97, s98")
    e(f"s_mul_i32 s98, s3, 5120\ns_add_u32 s98, s98, {L_WQ}")
    e("s_waitcnt lgkmcnt(0)")
    ts(1)
    X, WQ, WUK, WS, OUT = 28, 32, 36, 40, 44
    srd(X, 4, 2304)
    XR = 32
    e(f"buffer_load_dwordx4 {vr(XR,4)}, v{vXO}, s[28:31], 0 offen\nbuffer_load_dwordx4 {vr(XR+4,4)}, v{vXO}, s[28:31], 0 offen offset:16\nbuffer_load_dword v{XR+8}, v{vXO}, s[28:31], 0 offen offset:32")
    srd(WS, 26, WS_SIZE)
    e(f"buffer_load_dword v{vTAG}, off, s[40:43], 0 sc1")
    srd(WQ, 8, 4718592)
    setexec(0x3FFFF)
    e(f"buffer_store_dwordx4 v[28:31], v16, s[40:43], 0 offen sc1")
    e("s_mov_b64 exec, -1")
    for it in range(5):
        e(f"s_mov_b32 m0, s98" if it == 0 else "s_add_u32 m0, m0, 0x400")
        if it == 4: setexec(0xFFFFFFFF)
        else: e("s_nop 0")
        e(f"buffer_load_dwordx4 v14, s[32:35], s96 offen lds")
        if it < 4: e(f"s_add_u32 s96, s96, {16*8192}")
    e("s_mov_b64 exec, -1")
    srd(WUK, 10, 4194304)
    WUKR = 112
    for t in range(4): e(f"buffer_load_dwordx4 {vr(WUKR+4*t,4)}, v15, s[36:39], s97 offen offset:{64*t}")
    srd(OUT, 22, 2304)
    e("s_barrier")
    e("; WALK")
    e(f"s_mov_b32 s{sHI}, 0xffff0000")
    vTA0, vTA1, vTA2, vXB = 17, 18, 19, 20
    e(f"v_bfe_u32 v12, v0, 2, 2\nv_and_b32 v13, 3, v0\nv_lshlrev_b32 v13, 3, v13\nv_lshl_add_u32 v13, v12, 6, v13\nv_add_u32 v13, s98, v13")
    e(f"v_add_u32 v{vTA2}, 0x1000, v13\nv_lshl_add_u32 v{vTA0}, v{vG}, 9, v13\nv_and_b32 v12, 1, v{vG}\nv_lshl_add_u32 v{vTA0}, v12, 5, v{vTA0}\nv_xor_b32 v{vTA1}, 32, v{vTA0}")
    e(f"v_and_b32 v12, 1, v{vN}\nv_mul_u32_u24 v12, 0x480, v12\nv_lshl_add_u32 v{vXB}, v{vG}, 4, v12\nv_add_u32 v{vXB}, {L_XN}, v{vXB}")
    e(f"s_mul_i32 s{sT1}, s{sJ}, 144\nv_add_u32 v21, s{sT1}, v{vXB}")
    e(f"v_add_u32 v{vXO}, {L_XN}, v{vXO}")
    XB = 152
    for i in range(4): e(f"v_mov_b32 v{XB+8+i}, 0")
    XF = 42
    e("s_waitcnt vmcnt(11)")
    ts(2)
    for k in range(9): e(f"v_lshlrev_b32 v{XF+2*k}, 16, v{XR+k}\nv_and_b32 v{XF+2*k+1}, s{sHI}, v{XR+k}")
    e(f"v_pk_add_f32 v[60:61], {vr(XF,2)}, {vr(XF+2,2)}")
    for k in range(2, 9): e(f"v_pk_add_f32 v[60:61], v[60:61], {vr(XF+2*k,2)}")
    e("v_add_f32 v60, v60, v61")
    def reduce32(v, t):
        for c in (QP1, QP2, "row_half_mirror", "row_mirror"): dpp("v_add_f32", v, v, v, c)
        e(f"v_mov_b32 v{t}, v{v}\nv_permlane16_swap_b32 v{t}, v{v}\nv_add_f32 v{v}, v{v}, v{t}")
    def bfr(v): e(f"v_cvt_pk_bf16_f32 v{v}, v{v}, v{v}\nv_and_b32 v{v}, s{sHI}, v{v}")
    reduce32(60, 61)
    e(f"v_mul_f32 v60, {f2h(1/576)}, v60")
    for k in range(9):
        e(f"v_pk_add_f32 v[22:23], {vr(XF+2*k,2)}, v[60:61] op_sel_hi:[1,0] neg_lo:[0,1] neg_hi:[0,1]")
        e("v_pk_mul_f32 v[62:63], v[22:23], v[22:23]" if k == 0 else "v_pk_fma_f32 v[62:63], v[22:23], v[22:23], v[62:63]")
    e("v_add_f32 v62, v62, v63")
    reduce32(62, 63)
    e(f"v_mul_f32 v62, {f2h(1/576)}, v62"); bfr(62)
    e("v_add_f32 v62, 0x3727c5ac, v62"); bfr(62)
    e("v_sqrt_f32 v62, v62"); bfr(60); bfr(62)
    e("v_rcp_f32 v62, v62")
    for k in range(9):
        e(f"v_pk_add_f32 {vr(XF+2*k,2)}, {vr(XF+2*k,2)}, v[60:61] op_sel_hi:[1,0] neg_lo:[0,1] neg_hi:[0,1]")
        cvtpk(XR+k, XF+2*k, XF+2*k+1)
    for k in range(9): e(f"v_lshlrev_b32 v{XF+2*k}, 16, v{XR+k}\nv_and_b32 v{XF+2*k+1}, s{sHI}, v{XR+k}")
    for k in range(9):
        e(f"v_pk_mul_f32 {vr(XF+2*k,2)}, {vr(XF+2*k,2)}, v[62:63] op_sel_hi:[1,0]")
        cvtpk(XR+k, XF+2*k, XF+2*k+1)
        if k & 1: e(f"ds_write2_b32 v{vXO}, v{XR+k-1}, v{XR+k} offset0:{k-1} offset1:{k}")
    e(f"ds_write_b32 v{vXO}, v{XR+8} offset:32")
    e(f"ds_read_b128 {vr(XB,4)}, v21\nds_read_b128 {vr(XB+4,4)}, v21 offset:64")
    setexec(0xFFFF)
    e(f"ds_read_b128 {vr(XB+8,4)}, v21 offset:128")
    e("s_mov_b64 exec, -1")
    e(f"v_and_b32 v12, 1, v{vN}\nv_lshlrev_b32 v22, 9, v12\nv_bfe_u32 v12, v{vN}, 1, 1\nv_lshl_add_u32 v12, v12, 2, v{vG}\nv_lshl_add_u32 v22, v12, 4, v22")
    e(f"s_lshl3_add_u32 s{sT1}, s{sH}, s{sJ}\ns_lshl_b32 s{sT1}, s{sT1}, 10\ns_lshl_b32 s{sT2}, s3, 7\ns_add_u32 s{sT1}, s{sT1}, s{sT2}\ns_add_u32 s{sT1}, s{sT1}, {WS_S1}")
    e(f"s_lshl_b32 s{sT2}, s{sH}, 13\ns_lshl_b32 s{sT3}, s3, 11\ns_add_u32 s{sT2}, s{sT2}, s{sT3}\ns_add_u32 s{sT2}, s{sT2}, {WS_S1}")
    setmask(sM0, rep16(0xCCCC))
    e("s_waitcnt vmcnt(4)")
    ts(3)
    QA_ = 128; ACC = 64
    for st in range(3):
        for T in range(2):
            for hf in range(2):
                d = QA_ + 8*st + 4*T + 2*hf
                if st < 2: e(f"ds_read_b64_tr_b16 {vr(d,2)}, v{vTA0+T} offset:{st*2048+hf*256}")
                else: e(f"ds_read_b64_tr_b16 {vr(d,2)}, v{vTA2} offset:{hf*256+T*32}")
    e(f"s_mov_b32 s{sT3}, 1664525\nv_mul_lo_u32 v{vTAG}, v{vTAG}, s{sT3}\nv_add_u32 v{vTAG}, 0x3c6ef35f, v{vTAG}")
    for st in range(3):
        e(f"s_waitcnt lgkmcnt({8-4*st})")
        for T in range(2): mfma32(ACC+4*T, QA_+8*st+4*T, XB+4*st, ACC+4*T if st else None)
    e(f"v_mov_b32 v25, v{vTAG}\nv_mov_b32 v27, v{vTAG}")
    cvtpk(12, ACC, ACC+1); cvtpk(13, ACC+2, ACC+3); cvtpk(24, ACC+4, ACC+5); cvtpk(26, ACC+6, ACC+7)
    e(f"v_cndmask_b32 v24, v12, v24, s[{sM0}:{sM0+1}]\nv_cndmask_b32 v26, v13, v26, s[{sM0}:{sM0+1}]")
    setexec(rep16(0xF))
    e(f"buffer_store_dwordx4 v[24:27], v22, s[40:43], s{sT1} offen sc1")
    e("s_mov_b64 exec, -1")
    ts(4)
    if STOP <= 1: e("s_branch L_done")
    G = 96
    e(f"v_lshrrev_b32 v12, 5, v0\nv_lshlrev_b32 v12, 3, v12\ns_lshl_b32 s{sT3}, s3, 1\nv_add_u32 v12, s{sT3}, v12")
    e(f"v_bfe_u32 v13, v0, 1, 4\nv_xor_b32 v13, v13, v12\nv_lshlrev_b32 v13, 4, v13\nv_lshl_add_u32 v13, v12, 8, v13\nv_and_b32 v12, 1, v0\nv_lshl_add_u32 v13, v12, 3, v13")
    e(f"v_add_u32 v22, {L_QB}, v13\nv_xor_b32 v23, 16, v22\nv_add_u32 v23, 0x100, v23")
    e(f"v_xor_b32 v12, v{vG}, v{vN}\nv_lshlrev_b32 v12, 4, v12\nv_lshl_add_u32 v12, v{vN}, 8, v12\nv_add_u32 v12, {L_QB}, v12\nv_xor_b32 v13, 64, v12\nv_xor_b32 v14, 0x80, v12\nv_xor_b32 v15, 0xc0, v12")
    e(f"v_lshrrev_b32 v16, 3, v{vN}\nv_lshlrev_b32 v16, 16, v16\nv_lshl_add_u32 v16, v{vG}, 4, v16")
    e(f"s_lshl4_add_u32 s{sT1}, s{sHGT}, s{sHL}\ns_lshl_b32 s{sT1}, s{sT1}, 11\ns_lshl2_add_u32 s{sT3}, s{sJ}, s3\ns_lshl_b32 s{sT3}, s{sT3}, 6\ns_add_u32 s{sT1}, s{sT1}, s{sT3}\ns_add_u32 s{sT1}, s{sT1}, {WS_S2}")
    l = a.lab("L_s1")
    e(f"{l}:\nbuffer_load_dwordx4 {vr(G,4)}, v{vL16}, s[40:43], s{sT2} offen sc1\nbuffer_load_dwordx4 {vr(G+4,4)}, v{vL16}, s[40:43], s{sT2} offen offset:1024 sc1")
    spin_check(1)
    e("s_waitcnt vmcnt(0)")
    check_regs([G+1, G+3, G+5, G+7], "tag")
    e(f"s_cbranch_scc0 {l}")
    ts(5)
    e(f"ds_write2_b32 v22, v{G}, v{G+2} offset1:1\nds_write2_b32 v23, v{G+4}, v{G+6} offset1:1")
    setflag(1)
    thr(1, MS["CLEAN"])
    waitflags(2)
    QB_ = 32
    for t in range(4): e(f"ds_read_b128 {vr(QB_+4*t,4)}, v{12+t}")
    e(f"s_mov_b32 s{sC0}, {f2h(128**-0.5*1.4426950408889634)}")
    for t in range(4):
        e(f"s_waitcnt lgkmcnt({3-t})")
        mfma32(ACC, WUKR+4*t, QB_+4*t, ACC if t else None)
    e(f"v_mov_b32 v25, v{vTAG}\nv_mov_b32 v27, v{vTAG}")
    for c in (QP1, QP2, "row_half_mirror"):
        for r in range(4): dpp("v_add_f32", ACC+r, ACC+r, ACC+r, c)
    for r in range(4): e(f"v_mul_f32 v{ACC+r}, s{sC0}, v{ACC+r}")
    cvtpk(24, ACC, ACC+1); cvtpk(26, ACC+2, ACC+3)
    setexec(rep16(0x0101))
    e(f"buffer_store_dwordx4 v[24:27], v16, s[40:43], s{sT1} offen sc1")
    e("s_mov_b64 exec, -1")
    ts(6)
    if STOP <= 2: e("s_branch L_done")
    KV = 128
    vKA = 12
    e(f"v_and_b32 v25, 7, v{vN}\nv_lshlrev_b32 v25, 1, v25\nv_bfe_u32 v26, v{vN}, 2, 1\nv_or_b32 v25, v25, v26\nv_xor_b32 v25, v25, v{vG}\nv_lshlrev_b32 v25, 4, v25")
    e(f"s_lshl_b32 s{sT1}, s3, 15\nv_lshl_add_u32 v25, v{vN}, 10, v25\nv_add_u32 v{vKA}, s{sT1}, v25\nv_xor_b32 v{vKA+1}, 64, v{vKA}\nv_xor_b32 v{vKA+2}, 0x80, v{vKA}\nv_xor_b32 v{vKA+3}, 0xc0, v{vKA}")
    e(f"v_xor_b32 v25, v{vG}, v{vN}\nv_lshlrev_b32 v25, 4, v25\nv_lshl_add_u32 v25, v{vN}, 10, v25\nv_add_u32 v16, {L_QA}, v25\nv_xor_b32 v17, 64, v16\nv_xor_b32 v18, 0x80, v16\nv_xor_b32 v19, 0xc0, v16")
    e(f"s_lshl_b32 s{sT1}, s3, 2\nv_lshrrev_b32 v25, 1, v0\nv_xor_b32 v25, s{sT1}, v25\nv_lshlrev_b32 v25, 4, v25\nv_and_b32 v26, 1, v0\nv_lshl_add_u32 v25, v26, 3, v25\ns_lshl_b32 s{sT1}, s3, 12\ns_add_u32 s{sT1}, s{sT1}, {L_QA}\nv_add_u32 v21, s{sT1}, v25")
    for hh in range(1, 4): e(f"v_xor_b32 v{21+hh}, {16*hh}, v21\nv_add_u32 v{21+hh}, {hex(1024*hh)}, v{21+hh}")
    e(f"s_lshl1_add_u32 s{sT2}, s{sB}, s{sHGA}\ns_lshl_b32 s{sT2}, s{sT2}, 15\ns_lshl_b32 s{sT3}, s3, 13\ns_add_u32 s{sT2}, s{sT2}, s{sT3}\ns_add_u32 s{sT2}, s{sT2}, {WS_S2}\ns_add_u32 s{sT3}, s{sT2}, 0x1000")
    ca = cfg["clean_after"]
    e(f"s_add_u32 s{sT1}, s3, 1")
    if ca < 4: e(f"s_cmp_ge_u32 s3, {ca}\ns_addc_u32 s{sT1}, s{sT1}, 0")
    thr(0, f"s{sT1}")
    waitflags(3)
    def kread(T, t): return f"ds_read_b128 {vr(KV+64*T+4*t,4)}, v{vKA+(t&3)} offset:{T*16384+(t>>2)*256}"
    for t in range(16): e(kread(0, t))
    l = a.lab("L_s2")
    e(f"{l}:")
    for i in range(8): e(f"buffer_load_dwordx4 {vr(G+4*i,4)}, v{vL16}, s[40:43], s{sT2+(i>>2)} offen offset:{(i&3)*1024} sc1")
    spin_check(4)
    nopad_on()
    for i in range(8):
        e(f"s_waitcnt vmcnt({7-i})\nv_cmpx_eq_u32 vcc, v{G+4*i+1}, v{vTAG}\nv_cmpx_eq_u32 vcc, v{G+4*i+3}, v{vTAG}")
    e("s_cmp_eq_u64 exec, -1\ns_mov_b64 exec, -1")
    nopad_off()
    e(f"s_cbranch_scc0 {l}")
    ts(7)
    for i in range(8):
        e(f"ds_write2_b32 v{21+(i>>1)}, v{G+4*i}, v{G+4*i+2} offset0:{(i&1)*128} offset1:{(i&1)*128+1}")
    setflag(2)
    thr(0, MS["G7"])
    waitflags(5)
    for t in range(16): e(kread(1, t))
    e(f"v_bfe_u32 v25, v0, 2, 2\nv_and_b32 v26, 1, v{vG}\nv_lshl_add_u32 v26, v26, 2, v25\nv_lshlrev_b32 v27, 1, v26\nv_lshrrev_b32 v26, 2, v26\nv_or_b32 v27, v27, v26")
    e(f"v_bfe_u32 v26, v0, 1, 1\nv_xor_b32 v27, v27, v26\nv_lshlrev_b32 v27, 4, v27\nv_and_b32 v26, 1, v0\nv_lshl_add_u32 v27, v26, 3, v27")
    e(f"v_lshl_add_u32 v25, v{vG}, 2, v25\nv_lshl_add_u32 v27, v25, 10, v27\ns_lshl_b32 s{sT1}, s3, 8\nv_add_u32 v21, s{sT1}, v27")
    thr(2, 0)
    waitflags(6)
    ts(8)
    BF = [32+4*t for t in range(8)] + [96+4*t for t in range(8)]
    for ct in range(1, 8): e(f"v_xor_b32 v{21+ct}, {hex(32*ct)}, v21")
    for t in range(16): e(f"ds_read_b128 {vr(BF[t],4)}, v{16+(t&3)} offset:{(t>>2)*256}")
    vslot = []
    for t in range(16): vslot += [KV+4*t, KV+64+4*t]
    vfr = {}
    k = 0
    for kw in (0, 1, 2, 3):
        for ct in range(8):
            vfr[(ct, kw)] = vslot[k]; k += 1
    def vread(ct, kw, T): return f"ds_read_b64_tr_b16 {vr(vfr[(ct,kw)]+2*T,2)}, v{21+ct} offset:{(kw&1)*32768+T*16384}"
    vreads = [vread(ct, kw, T) for kw in range(4) for ct in range(8) for T in range(2)]
    for t in range(16):
        if t < 8: e(f"s_waitcnt lgkmcnt({15-t})" if t < 7 else "s_waitcnt lgkmcnt(0)")
        mfma32(ACC, KV+4*t, BF[t], ACC if t else None)
        mfma32(ACC+4, KV+64+4*t, BF[t], ACC+4 if t else None)
        if t >= 8:
            for x in vreads[4*(t-8):4*(t-8)+4]: e(x)
    for ct in range(8): e(f"v_add_u32 v{21+ct}, 0x10000, v{21+ct}")
    sm = Asm()
    s_ = sm
    s_(f"v_max3_f32 v72, v64, v65, v66\nv_max3_f32 v73, v67, v68, v69\nv_max3_f32 v72, v72, v70, v71\nv_max_f32 v72, v72, v73")
    s_("v_mov_b32 v73, v72\nv_permlane16_swap_b32 v73, v72\nv_max_f32 v72, v72, v73\nv_mov_b32 v73, v72\nv_permlane32_swap_b32 v73, v72\nv_max_f32 v72, v72, v73\nv_ceil_f32 v72, v72")
    for r in range(8): s_(f"v_sub_f32 v{64+r}, v{64+r}, v72")
    for r in range(8): s_(f"v_exp_f32 v{64+r}, v{64+r}")
    for r in range(4): s_(f"v_cvt_pk_bf16_f32 v{76+r}, v{64+2*r}, v{65+2*r}")
    for x in interleave(sm.L, vreads[32:], start=2, every=1, per=2): e(x)
    e(f"s_lshl_b32 s{sT1}, s3, 10\ns_add_u32 s{sT1}, s{sT1}, {L_PB}\nv_add_u32 v12, s{sT1}, v{vL16}\nds_write_b128 v12, v[76:79]")
    e(f"s_lshl_b32 s{sT1}, s3, 2\nv_lshlrev_b32 v13, 4, v{vN}\nv_add_u32 v13, {L_MX}, v13\nv_add_u32 v14, s{sT1}, v13\nds_write_b32 v14, v72")
    setflag(3)
    e(f"v_add_u32 v12, {L_PB}, v{vL16}")
    e(f"v_lshlrev_b32 v15, 9, v{vN}\ns_lshl_b32 s{sT1}, s{sHGA}, 13\ns_lshl_b32 s{sT2}, s{sB}, 8\ns_add_u32 s{sT1}, s{sT1}, s{sT2}\ns_lshl2_add_u32 s{sT1}, s{sSPLIT}, s{sT1}\ns_add_u32 s{sT2}, s{sT1}, {WS_ML}\ns_add_u32 s{sT1}, s{sT1}, {WS_MM}")
    e(f"s_lshl_b32 s{sT3}, s3, 2\ns_mov_b64 s[{sM1}:{sM1+1}], 15\ns_lshl_b64 s[{sM1}:{sM1+1}], s[{sM1}:{sM1+1}], s{sT3}")
    e(f"v_lshlrev_b32 v16, 17, v{vN}\nv_lshl_add_u32 v16, v{vG}, 4, v16")
    e(f"s_lshl_b32 s{sT3}, s{sHGA}, 21\ns_lshl_b32 s{sT4}, s3, 15\ns_add_u32 s{sT3}, s{sT3}, s{sT4}\ns_lshl_b32 s{sT4}, s{sB}, 6\ns_add_u32 s{sT4}, s{sT4}, s{sSPLIT}\ns_lshl_b32 s{sT4}, s{sT4}, 7\ns_add_u32 s{sT3}, s{sT3}, s{sT4}\ns_add_u32 s{sT3}, s{sT3}, {WS_S3}\ns_add_u32 s{sT4}, s{sT3}, 0x4000")
    thr(3, 0)
    waitflags(7)
    ts(9)
    PF = 32
    e(f"ds_read_b128 v[48:51], v13")
    for kw in range(4): e(f"ds_read_b128 {vr(PF+4*kw,4)}, v12 offset:{kw*1024}")
    setflag(4)
    e("s_waitcnt lgkmcnt(5)")
    e("v_max3_f32 v52, v48, v49, v50\nv_max_f32 v52, v52, v51")
    for kw in range(4): e(f"v_sub_f32 v{48+kw}, v52, v{48+kw}")
    for kw in range(4): e(f"v_cvt_u32_f32 v{48+kw}, v{48+kw}")
    for kw in range(4): e(f"v_min_u32 v{48+kw}, 0xff, v{48+kw}")
    e(f"s_mov_b32 s{sC0}, 0x800080")
    for kw in range(4): e(f"v_mul_u32_u24 v{48+kw}, s{sC0}, v{48+kw}")
    e("v_min_u32 v52, -2, v52")
    e(f"s_mov_b64 exec, s[{sM1}:{sM1+1}]\nbuffer_store_dword v52, v15, s[40:43], s{sT1} offen sc1\ns_mov_b64 exec, -1")
    for kw in range(4):
        e(f"s_waitcnt lgkmcnt({4-kw})")
        for r in range(4): e(f"v_pk_sub_u16 v{PF+4*kw+r}, v{PF+4*kw+r}, v{48+kw} clamp")
    for r in range(4): e(f"v_mov_b32 v{56+r}, 0x3f803f80")
    PK = 96
    def pack(tp):
        o = []
        for ee in range(2):
            acc = ACC + 4*(2*tp+ee)
            o += [f"v_cvt_pk_bf16_f32 v{PK+4*tp+2*ee}, v{acc}, v{acc+1}", f"v_cvt_pk_bf16_f32 v{PK+4*tp+2*ee+1}, v{acc+2}, v{acc+3}"]
        o += [f"v_min_u32 v{PK+4*tp+1}, -2, v{PK+4*tp+1}", f"v_min_u32 v{PK+4*tp+3}, -2, v{PK+4*tp+3}"]
        o += [f"buffer_store_dwordx4 {vr(PK+4*tp,4)}, v16, s[40:43], s{sT3+(tp>>1)} offen offset:{(tp&1)*64} sc1"]
        return o
    for tp in range(5):
        mf = Asm()
        for kw in range(4):
            if tp < 4:
                for ee in range(2):
                    ct = 2*tp+ee
                    mf(f"v_mfma_f32_16x16x32_bf16 {vr(ACC+4*ct,4)}, {vr(vfr[(ct,kw)],4)}, {vr(PF+4*kw,4)}, {vr(ACC+4*ct,4) if kw else 0}")
            else:
                mf(f"v_mfma_f32_16x16x32_bf16 v[52:55], v[56:59], {vr(PF+4*kw,4)}, {'v[52:55]' if kw else 0}")
        if tp == 0:
            for x in mf.L: e(x)
        else:
            m = mf.L; p = pack(tp-1)
            e(m[0]); e("s_nop 2"); e(m[1]); e("s_nop 2")
            rest = m[2:]; k = 0
            for x in rest:
                e(x)
                for y in p[k:k+3]: e(y)
                k += 3
            for y in p[k:]: e(y)
    e("v_min_u32 v52, -2, v52")
    e(f"s_mov_b64 exec, s[{sM1}:{sM1+1}]\nbuffer_store_dword v52, v15, s[40:43], s{sT2} offen sc1\ns_mov_b64 exec, -1")
    ts(10)
    if STOP <= 3: e("s_branch L_done")
    M4, M2, L2, PAY, AM, MK = 32, 36, 38, 40, 112, 56
    e(f"v_lshrrev_b32 v12, 3, v{vN}\nv_lshlrev_b32 v13, 8, v12\nv_lshl_add_u32 v14, v{vG}, 4, v13")
    e(f"v_and_b32 v15, 7, v{vN}\nv_lshl_add_u32 v13, v15, 5, v13\nv_lshl_add_u32 v13, v{vG}, 3, v13")
    e(f"v_lshlrev_b32 v16, 13, v12\nv_lshl_add_u32 v16, v{vG}, 9, v16\nv_lshl_add_u32 v16, v15, 4, v16")
    e(f"s_lshl_b32 s{sT1}, s{sH}, 9\ns_add_u32 s{sT2}, s{sT1}, {WS_ML}\ns_add_u32 s{sT1}, s{sT1}, {WS_MM}\ns_lshl_b32 s{sT3}, s3, 6\ns_add_u32 s{sT3}, s{sT3}, s{sT1}")
    e(f"s_lshl3_add_u32 s{sT4}, s{sH}, s{sJ}\ns_lshl_b32 s{sT4}, s{sT4}, 14\ns_lshl_b32 s{sT5}, s3, 11\ns_add_u32 s{sT4}, s{sT4}, s{sT5}\ns_add_u32 s{sT4}, s{sT4}, {WS_S3}")
    def ld_meta(): e(f"buffer_load_dwordx4 {vr(M4,4)}, v14, s[40:43], s{sT3} offen sc1\nbuffer_load_dwordx2 {vr(M2,2)}, v13, s[40:43], s{sT1} offen sc1")
    def ld_pay():
        for m in range(4): e(f"buffer_load_dwordx4 {vr(PAY+4*m,4)}, v16, s[40:43], s{sT4} offen offset:{128*m} sc1")
        e(f"buffer_load_dwordx2 {vr(L2,2)}, v13, s[40:43], s{sT2} offen sc1")
    ld_meta(); ld_pay()
    e(f"v_and_b32 v17, 1, v{vN}\nv_lshlrev_b32 v17, 4, v17\nv_mov_b32 v18, 0xffff\nv_lshlrev_b32 v17, v17, v18\nv_bfe_u32 v18, v{vN}, 1, 2")
    for r in range(4): e(f"v_cmp_eq_u32 vcc, {r}, v18\nv_cndmask_b32 v{MK+r}, 0, v17, vcc")
    e(f"v_bfe_u32 v19, v0, 2, 2\nv_and_b32 v21, 1, v{vG}\nv_lshl_add_u32 v21, v21, 2, v19\nv_lshlrev_b32 v21, 1, v21\nv_bfe_u32 v22, v0, 1, 1\ns_lshl_b32 s{sT5}, s3, 2\nv_or_b32 v22, s{sT5}, v22\nv_xor_b32 v21, v21, v22\nv_lshlrev_b32 v21, 4, v21")
    e(f"v_and_b32 v22, 1, v0\nv_lshl_add_u32 v21, v22, 3, v21\nv_lshl_add_u32 v19, v{vG}, 3, v19\nv_lshl_add_u32 v17, v19, 8, v21\nv_xor_b32 v18, 32, v17")
    if L_WUV: e(f"v_add_u32 v17, {L_WUV}, v17\nv_add_u32 v18, {L_WUV}, v18")
    e(f"s_mul_i32 s{sT5}, s3, 144\ns_add_u32 s{sT5}, s{sT5}, {L_LB}\nv_mul_u32_u24 v19, 0x240, v12\nv_bfe_u32 v21, v{vN}, 2, 1\nv_lshl_add_u32 v19, v21, 6, v19\nv_and_b32 v21, 1, v{vG}\nv_lshl_add_u32 v19, v21, 5, v19\nv_and_b32 v21, 3, v{vN}\nv_lshl_add_u32 v19, v21, 3, v19\nv_add_u32 v19, s{sT5}, v19")
    e(f"v_lshl_add_u32 v21, v12, 2, v21\nv_mul_u32_u24 v21, 0x90, v21\nv_lshl_add_u32 v21, v{vG}, 4, v21\nv_add_u32 v21, {L_LB}, v21")
    e(f"v_and_b32 v22, 1, v{vN}\nv_lshlrev_b32 v22, 10, v22\nv_lshl_add_u32 v22, v12, 6, v22\nv_lshl_add_u32 v22, v{vG}, 4, v22")
    e(f"s_lshl_b32 s{sT5}, s{sH}, 13\ns_lshl_b32 s{sT6}, s3, 11\ns_add_u32 s{sT5}, s{sT5}, s{sT6}\ns_lshl_b32 s{sT6}, s{sJ}, 7\ns_add_u32 s{sT5}, s{sT5}, s{sT6}\ns_add_u32 s{sT5}, s{sT5}, {WS_S4}")
    thr(0, MS["WUV"])
    waitflags(8)
    UV = 128
    for st in range(2):
        for T in range(2):
            for hf in range(2): e(f"ds_read_b64_tr_b16 {vr(UV+8*st+4*T+2*hf,2)}, v{17+T} offset:{st*8192+hf*1024}")
    e("s_waitcnt vmcnt(5)")
    l = a.lab("L_mm"); l2 = a.lab("L_mmok")
    e(f"{l}:")
    check_regs([M4, M4+1, M4+2, M4+3, M2, M2+1], "mark")
    e(f"s_cbranch_scc1 {l2}")
    ld_meta(); spin_check(9); e(f"s_waitcnt vmcnt(0)\ns_branch {l}\n{l2}:")
    ts(11)
    e(f"v_max_f32 v60, v{M2}, v{M2+1}")
    for c in (QP1, QP2, "row_half_mirror"): dpp("v_max_f32", 60, 60, 60, c)
    e("v_mov_b32 v61, v60\nv_permlane16_swap_b32 v61, v60\nv_max_f32 v60, v60, v61\nv_mov_b32 v61, v60\nv_permlane32_swap_b32 v61, v60\nv_max_f32 v60, v60, v61")
    for r in range(4): e(f"v_sub_f32 v{M4+r}, v{M4+r}, v60")
    for r in range(2): e(f"v_sub_f32 v{M2+r}, v{M2+r}, v60")
    for r in range(4): e(f"v_exp_f32 v{M4+r}, v{M4+r}")
    for r in range(2): e(f"v_exp_f32 v{M2+r}, v{M2+r}")
    for r in range(4): cvtpk(M4+r, M4+r, M4+r)
    for m in range(4):
        for r in range(4): e(f"v_and_b32 v{AM+4*m+r}, v{M4+m}, v{MK+r}")
    e("s_waitcnt vmcnt(0)")
    l = a.lab("L_s3"); l2 = a.lab("L_s3ok")
    e(f"{l}:")
    check_regs([PAY+4*m+r for m in range(4) for r in (1, 3)] + [L2, L2+1], "mark")
    e(f"s_cbranch_scc1 {l2}")
    ld_pay(); spin_check(10); e(f"s_waitcnt vmcnt(0)\ns_branch {l}\n{l2}:")
    ts(12)
    for m in range(4): mfma32(ACC, AM+4*m, PAY+4*m, ACC if m else None)
    e(f"v_mul_f32 v60, v{M2}, v{L2}\nv_fmac_f32 v60, v{M2+1}, v{L2+1}")
    dpp("v_add_f32", 60, 60, 60, QP1); dpp("v_add_f32", 60, 60, 60, QP2)
    cvtpk(62, ACC, ACC+1); cvtpk(63, ACC+2, ACC+3)
    setexec(0xFF00FF0000FF00FF)
    e("ds_write_b64 v19, v[62:63]")
    e("s_mov_b64 exec, -1")
    setflag(5)
    dpp("v_add_f32", 60, 60, 60, "row_half_mirror")
    e("v_mov_b32 v61, v60\nv_permlane16_swap_b32 v61, v60\nv_add_f32 v60, v60, v61\nv_mov_b32 v61, v60\nv_permlane32_swap_b32 v61, v60\nv_add_f32 v60, v60, v61\nv_rcp_f32 v60, v60")
    setmask(sM0, rep16(0xAAAA))
    thr(5, 0)
    waitflags(11)
    e("ds_read_b128 v[32:35], v21\nds_read_b128 v[36:39], v21 offset:64")
    for st in range(2):
        e(f"s_waitcnt lgkmcnt({1-st})")
        for T in range(2): mfma32(ACC+4*T, UV+8*st+4*T, 32+4*st, ACC+4*T if st else None)
    for c in (QP1, QP2):
        for r in range(8): dpp("v_add_f32", ACC+r, ACC+r, ACC+r, c)
    for r in range(4): e(f"v_cndmask_b32 v{ACC+r}, v{ACC+r}, v{ACC+4+r}, s[{sM0}:{sM0+1}]")
    for r in range(4): e(f"v_mul_f32 v{ACC+r}, v{ACC+r}, v60")
    for r in (1, 3): e(f"v_min_u32 v{ACC+r}, -2, v{ACC+r}")
    setexec(rep16(0x0303))
    e(f"buffer_store_dwordx4 {vr(ACC,4)}, v22, s[40:43], s{sT5} offen sc1")
    e("s_mov_b64 exec, -1")
    ts(13)
    if STOP <= 4: e("s_branch L_done")
    OA = 72
    for r in range(8): e(f"v_mov_b32 v{OA+r}, 0")
    e(f"v_bfe_u32 v13, v0, 2, 2\nv_lshl_add_u32 v13, v{vG}, 2, v13\nv_bfe_u32 v14, v13, 1, 2\nv_xor_b32 v14, s3, v14\nv_lshlrev_b32 v14, 5, v14\nv_and_b32 v15, 3, v0\nv_lshl_add_u32 v14, v15, 3, v14\nv_mul_u32_u24 v13, 0x480, v13\nv_add_u32 v12, v13, v14")
    e(f"v_add_u32 v16, {L_WO}, v12\nv_add_u32 v12, {L_W2}, v12")
    e(f"v_lshrrev_b32 v13, 1, v{vN}\nv_lshlrev_b32 v13, 7, v13\nv_and_b32 v15, 1, v{vN}\nv_lshl_add_u32 v13, v15, 6, v13\nv_lshl_add_u32 v13, v{vG}, 4, v13")
    e(f"s_lshl3_add_u32 s{sT1}, s{sH}, s{sJ}\ns_lshl_b32 s{sT1}, s{sT1}, 10\ns_add_u32 s{sT1}, s{sT1}, {WS_S4}")
    e(f"v_mul_u32_u24 v15, 5, v15\nv_lshrrev_b32 v14, 1, v{vN}\nv_add_u32 v14, v14, v15\nv_lshlrev_b32 v14, 16, v14\nv_lshl_add_u32 v14, v{vG}, 4, v14")
    e(f"s_lshl_b32 s{sT2}, s3, 14\ns_lshl_b32 s{sT3}, s2, 6\ns_add_u32 s{sT2}, s{sT2}, s{sT3}\ns_add_u32 s{sT2}, s{sT2}, {WS_S5}")
    def slotmask(q): return f"s[{80+2*q}:{81+2*q}]" if not TS else f"s[{20+0}:{21+0}]"
    e(f"s_cmp_ge_u32 s{sS}, 18\ns_cbranch_scc1 L_noffn")
    e(f"v_bfe_u32 v15, v0, 2, 2\nv_lshl_add_u32 v15, v{vG}, 3, v15\nv_lshlrev_b32 v15, 6, v15\nv_and_b32 v17, 1, v{vG}\nv_lshl_add_u32 v15, v17, 5, v15\nv_and_b32 v17, 3, v0\nv_lshl_add_u32 v15, v17, 3, v15\nv_add_u32 v17, {L_W1}, v15\nv_xor_b32 v18, 32, v17")
    thr(0, MS["W1"])
    waitflags(12)
    NB = 6
    def ffn_reads(st):
        b = 128 + 12*(st % NB)
        o = [f"ds_read_b128 {vr(b+8,4)}, v{vXB} offset:{64*st}"]
        for T in range(2):
            for hf in range(2): o.append(f"ds_read_b64_tr_b16 {vr(b+4*T+2*hf,2)}, v{17+T} offset:{st*2048+hf*256}")
        return o
    for st in range(2):
        for x in ffn_reads(st): e(x)
    for st in range(18):
        if st+2 < 18:
            for x in ffn_reads(st+2): e(x)
        e(f"s_waitcnt lgkmcnt({10 if st+2 < 18 else (5 if st == 16 else 0)})")
        b = 128 + 12*(st % NB)
        for T in range(2): mfma32(ACC+4*T, b+4*T, b+8, ACC+4*T if st else None)
    thr(0, MS["W2"])
    for r in range(4): cvtpk(32+r, ACC+2*r, ACC+2*r+1)
    for r in range(4): e(f"v_lshlrev_b32 v{ACC+2*r}, 16, v{32+r}\nv_and_b32 v{ACC+2*r+1}, s{sHI}, v{32+r}")
    e(f"s_mov_b32 s{sC0}, 0xbfb8aa3b")
    for r in range(8): e(f"v_mul_f32 v{40+r}, s{sC0}, v{ACC+r}")
    for r in range(8): e(f"v_exp_f32 v{40+r}, v{40+r}")
    for r in range(8): e(f"v_add_f32 v{40+r}, 1.0, v{40+r}")
    for r in range(8): e(f"v_rcp_f32 v{40+r}, v{40+r}")
    for r in range(8): e(f"v_mul_f32 v{ACC+r}, v{ACC+r}, v{40+r}")
    for r in range(4): cvtpk(32+r, ACC+2*r, ACC+2*r+1)
    waitflags(13)
    for tt in range(9):
        for T in range(2): e(f"ds_read_b64_tr_b16 {vr(128+4*tt+2*T,2)}, v12 offset:{tt*128+T*18432}")
    for q in range(5):
        setmask(sM0, rep16(3 << (2*q)))
        for r in range(4): e(f"v_cndmask_b32 v{40+4*q+r}, 0, v{32+r}, s[{sM0}:{sM0+1}]")
    e("s_waitcnt lgkmcnt(0)")
    for tt in range(9):
        acc = OA + 4*(tt >= 5); q = tt % 5
        mfma32(acc, 128+4*tt, 40+4*q, acc)
    e("L_noffn:")
    ts(14)
    thr(0, MS["WO"])
    waitflags(14)
    for tt in range(9): e(f"ds_read_b64_tr_b16 {vr(168+2*tt,2)}, v16 offset:{tt*128}")
    l = a.lab("L_s4")
    e(f"{l}:\nbuffer_load_dwordx4 v[32:35], v13, s[40:43], s{sT1} offen sc1")
    spin_check(15)
    e("s_waitcnt vmcnt(0)")
    check_regs([33, 35], "mark")
    e(f"s_cbranch_scc0 {l}")
    ts(15)
    for c in (QP2, "row_ror:8", "row_ror:4"):
        for r in range(4): dpp("v_add_f32", 32+r, 32+r, 32+r, c)
    cvtpk(32, 32, 33); cvtpk(33, 34, 35)
    for q in range(5):
        setmask(sM0, rep16(3 << (2*q)))
        for r in range(2): e(f"v_cndmask_b32 v{40+2*q+r}, 0, v{32+r}, s[{sM0}:{sM0+1}]")
    e("s_waitcnt lgkmcnt(0)")
    for tt in range(9):
        acc = OA + 4*(tt >= 5); q = tt % 5
        mfma16(acc, 168+2*tt, 40+2*q, acc)
    setmask(sM0, rep16(0xAAAA))
    mk = f"s[{sM0}:{sM0+1}]"
    cvtpk(32, OA, OA+1); cvtpk(33, OA+2, OA+3); cvtpk(34, OA+4, OA+5); cvtpk(35, OA+6, OA+7)
    e(f"v_cndmask_b32 v36, v34, v32, {mk}\nv_cndmask_b32 v37, v35, v33, {mk}")
    e(f"v_mov_b32_dpp v38, v36 {QP1} row_mask:0xf bank_mask:0xf\nv_mov_b32_dpp v39, v37 {QP1} row_mask:0xf bank_mask:0xf")
    e(f"v_cndmask_b32 v40, v32, v38, {mk}\nv_cndmask_b32 v41, v33, v39, {mk}\nv_cndmask_b32 v42, v38, v34, {mk}\nv_cndmask_b32 v43, v39, v35, {mk}")
    e("v_min_u32 v41, -2, v41\nv_min_u32 v43, -2, v43")
    setexec(rep16(0x1FF))
    e(f"buffer_store_dwordx4 v[40:43], v14, s[40:43], s{sT2} offen sc1")
    e("s_mov_b64 exec, -1")
    ts(16)
    if STOP <= 5: e("s_branch L_done")
    e(f"s_cmp_lg_u32 s3, 0\ns_cbranch_scc1 L_done\ns_cmp_lt_u32 s{sS}, 27\ns_cbranch_scc1 L_done")
    e(f"s_sub_u32 s{sT1}, s{sS}, 27\ns_lshl3_add_u32 s{sT1}, s{sT1}, s{sX}\ns_cmp_ge_u32 s{sT1}, 36\ns_cbranch_scc1 L_done")
    e(f"v_and_b32 v12, 1, v{vG}\nv_mul_u32_u24 v12, 0x480, v12\nv_and_b32 v13, 3, v{vN}\nv_lshl_add_u32 v12, v13, 3, v12\ns_lshl_b32 s{sT2}, s{sT1}, 5")
    e(f"buffer_load_dwordx2 v[32:33], v12, s[28:31], s{sT2} offen")
    e(f"s_lshl_b32 s{sT3}, s{sT1}, 14\ns_add_u32 s{sT3}, s{sT3}, {WS_S5}\ns_add_u32 s{sT4}, s{sT3}, 0x1000\ns_add_u32 s{sT5}, s{sT3}, 0x2000\ns_add_u32 s{sT6}, s{sT3}, 0x3000")
    for r in range(4): e(f"v_and_b32 v{MK+r}, 0x3f803f80, v{MK+r}")
    l = a.lab("L_s5")
    e(f"{l}:")
    for i in range(16): e(f"buffer_load_dwordx4 {vr(128+4*i,4)}, v{vL16}, s[40:43], s{sT3+(i>>2)} offen offset:{(i&3)*1024} sc1")
    spin_check(16)
    nopad_on()
    for i in range(16):
        e(f"s_waitcnt vmcnt({15-i})")
        mfma32(ACC, MK, 128+4*i, ACC if i else None)
        e(f"v_cmpx_ne_u32 vcc, -1, v{128+4*i+1}\nv_cmpx_ne_u32 vcc, -1, v{128+4*i+3}")
        if i < 15: e(f"s_and_b64 s[{sM0}:{sM0+1}], exec, s[{sM0}:{sM0+1}]\ns_mov_b64 exec, -1" if i else f"s_mov_b64 s[{sM0}:{sM0+1}], exec\ns_mov_b64 exec, -1")
    e(f"s_and_b64 s[{sM0}:{sM0+1}], exec, s[{sM0}:{sM0+1}]\ns_mov_b64 exec, -1\ns_cmp_eq_u64 s[{sM0}:{sM0+1}], -1")
    nopad_off()
    e(f"s_cbranch_scc0 {l}")
    ts(17)
    e(f"v_lshlrev_b32 v34, 16, v32\nv_and_b32 v35, s{sHI}, v32\nv_lshlrev_b32 v36, 16, v33\nv_and_b32 v37, s{sHI}, v33")
    for c in ("row_ror:8", "row_ror:4"):
        for r in range(4): dpp("v_add_f32", ACC+r, ACC+r, ACC+r, c)
    for r in range(4): e(f"v_add_f32 v{ACC+r}, v{ACC+r}, v{34+r}")
    cvtpk(38, ACC, ACC+1); cvtpk(39, ACC+2, ACC+3)
    setexec(0x000F000F)
    e(f"buffer_store_dwordx2 v[38:39], v12, s[44:47], s{sT2} offen")
    e(f"s_cmp_lg_u32 s{sT1}, 0\ns_cbranch_scc1 L_done")
    e("s_mov_b64 exec, 1")
    e(f"buffer_store_dword v{vTAG}, off, s[40:43], 0 sc1")
    e("s_branch L_done")

    e("L_loader:")
    e("s_setprio 2")
    VC = 16; VO = 24; VU = 34; VW1 = 36
    for q in range(8):
        f = ((q & 7) << 1) | ((q >> 2) & 1)
        e(f"v_xor_b32 v{VC+q}, {hex(16*f)}, v{vL16}" if f else f"v_mov_b32 v{VC+q}, v{vL16}")
    for i in range(4): e(f"v_mov_b32 v{12+i}, -1")
    e(f"s_lshl6_dummy" if False else f"s_lshl_b32 s96, s{sB}, 6\ns_add_u32 s96, s96, s{sSPLIT}\ns_lshl_b32 s96, s96, 17")
    e(f"s_lshl_b32 s97, s{sJ}, 19\ns_lshl_b32 s98, s{sH}, 8\ns_add_u32 s97, s97, s98")
    e(f"s_lshl3_add_u32 s98, s{sH}, s{sJ}\ns_lshl_b32 s99, s98, 14\ns_add_u32 s99, s99, {WS_S3}\ns_mul_i32 s98, s98, {16*1152}")
    e(f"s_mul_i32 s100, s{sX}, 18\ns_add_u32 s100, s100, s{sS}\ns_mul_i32 s101, s100, {32*1152}\ns_lshl_b32 s100, s100, 6")
    e("s_waitcnt lgkmcnt(0)")
    ts(1)
    srd(28, 6, 131072, add=96)
    srd(40, 26, WS_SIZE)
    e("s_barrier")
    ops = []
    gorder = [0, 32, 64, 96, 16, 48, 80, 112]
    def op(txt, ms=None): ops.append([txt, ms])
    sCL = 96
    for gi in range(9):
        if gi == cfg["clean_after"] or (gi == 8 and cfg["clean_after"] >= 8):
            for i in range(16):
                pre = f"s_add_u32 s99, s99, 0x1000\n" if (i and i % 4 == 0) else ""
                op(pre + f"buffer_store_dwordx4 v[12:15], v{vL16}, s[40:43], s99 offen offset:{(i&3)*1024} sc1")
            op(f"s_mul_i32 s99, s2, 2304\ns_add_u32 s99, s99, {WS_S5}\nbuffer_store_dwordx4 v[12:15], v{vL16}, s[40:43], s99 offen sc1")
            op(f"buffer_store_dwordx4 v[12:15], v{vL16}, s[40:43], s99 offen offset:1024 sc1")
            op(f"s_mov_b64 exec, 0xffff\nbuffer_store_dwordx4 v[12:15], v{vL16}, s[40:43], s99 offen offset:2048 sc1\ns_mov_b64 exec, -1", MS["CLEAN"])
        if gi < 8:
            for i in range(16):
                row = gorder[gi] + i
                pre = f"s_mov_b32 m0, {hex(row*1024)}\n" if i % 4 == 0 else ""
                op(pre + f"buffer_load_dwordx4 v{VC+(row&7)}, s[28:31], m0 offen offset:{(i&3)*1024} lds", MS[f"G{gi}"] if i == 15 else None)
    issued = [0]; done = [0]
    def signal(ms): e(f"v_mov_b32 v{vFV}, {ms}\nds_write_b32 v{vFW}, v{vFV}")
    def run(ops, drain=True, extra=None):
        for o in ops:
            inflight.append(o)
            if len(inflight) > W:
                e(f"s_waitcnt vmcnt({W-1})")
                d = inflight.pop(0)
                if d[1]: signal(d[1])
            e(o[0])
            if extra: extra.pop(0)() if extra else None
        if drain:
            while inflight:
                idx = next((i for i, o in enumerate(inflight) if o[1]), None)
                if idx is None: break
                e(f"s_waitcnt vmcnt({len(inflight)-idx-1})"); signal(inflight[idx][1])
                del inflight[:idx+1]
    inflight = []
    first = ops[:W]; rest = ops[W:]
    run(first, drain=False)
    srd(32, 12, 4194304 - 0, add=None); e("s_add_u32 s32, s32, s97\ns_addc_u32 s33, s33, 0\ns_sub_u32 s34, s34, s97")
    srd(36, 14, 18432, add=98)
    srd(44, 18, 5308416); e("s_add_u32 s44, s44, s100\ns_addc_u32 s45, s45, 0\ns_sub_u32 s46, s46, s100")
    srd(48, 20, 36864, add=101)
    e(f"v_lshlrev_b32 v4, 1, v{vG}" if False else f"v_lshlrev_b32 v{VU}, 1, v{vG}\nv_xor_b32 v{VU}, v{VU}, v{vN}\nv_lshlrev_b32 v{VU}, 4, v{VU}\nv_lshl_add_u32 v{VU}, v{vG}, 13, v{VU}\nv_xor_b32 v{VU+1}, 0x80, v{VU}")
    e(f"v_lshrrev_b32 v37, 2, v0\nv_mul_u32_u24 v{VW1}, 0x2400, v37\nv_lshrrev_b32 v37, 4, v0\nv_and_b32 v37, 2, v37\nv_and_b32 v38, 3, v0\nv_xor_b32 v37, v37, v38\nv_lshl_add_u32 v{VW1}, v37, 4, v{VW1}")
    for i in range(9):
        e(f"v_add_u32 v37, {hex(64*i)}, v0\nv_mul_u32_u24 v38, 0x38f, v37\nv_lshrrev_b32 v38, 16, v38\nv_mul_u32_u24 v39, 0x48, v38\nv_sub_u32 v40, v37, v39\nv_and_b32 v38, 6, v38\nv_xor_b32 v40, v40, v38\nv_add_u32 v40, v40, v39\nv_subrev_u32 v40, {hex(64*i)}, v40\nv_lshlrev_b32 v{VO+i}, 4, v40")
    run(rest, drain=True)
    ts(2)
    if STOP <= 3: e("s_branch L_done")
    thr(4, 0)
    waitflags(20)
    ts(3)
    ops = []
    for it in range(16):
        pre = f"s_mov_b32 m0, {hex(L_WUV)}\ns_mov_b32 s96, 0\ns_mov_b32 s97, 0x8000\n" if it == 0 else "s_addk_i32 m0, 0x400\ns_add_u32 s96, s96, s97\n"
        op(pre + f"buffer_load_dwordx4 v{VU+((it>>1)&1)}, s[32:35], s96 offen lds", MS["WUV"] if it == 15 else None)
    run(ops, drain=False)
    e(f"s_cmp_ge_u32 s{sS}, 18\ns_cbranch_scc1 L_ld_noffn")
    saved = [list(o) for o in inflight]
    ops = []
    for it in range(36):
        pre = f"s_mov_b32 m0, {hex(L_W1)}\ns_mov_b32 s96, 0\ns_mov_b32 s97, {16*9216}\n" if it == 0 else "s_addk_i32 m0, 0x400\ns_add_u32 s96, s96, s97\n"
        op(pre + f"buffer_load_dwordx4 v{VW1}, s[44:47], s96 offen lds", MS["W1"] if it == 35 else None)
    def lin(srdn, lbase, n, ms):
        for it in range(n):
            pre = ""
            if it % 4 == 0: pre = f"s_mov_b32 m0, {hex(lbase+it*1024)}\ns_movk_i32 s96, {hex(it*1024)}\n" if it*1024 < 32768 else f"s_mov_b32 m0, {hex(lbase+it*1024)}\ns_mov_b32 s96, {hex(it*1024)}\n"
            op(pre + f"buffer_load_dwordx4 v{VO+it%9}, s[{srdn}:{srdn+3}], s96 offen offset:{(it&3)*1024} lds", ms if it == n-1 else None)
    lin(48, L_W2, 36, MS["W2"])
    lin(36, L_WO, 18, MS["WO"])
    run(ops, drain=True)
    e("s_branch L_ld_done")
    e("L_ld_noffn:")
    inflight = saved
    ops = []
    lin(36, L_WO, 18, MS["WO"])
    run(ops, drain=True)
    e("L_ld_done:")
    ts(4)
    e("L_done:")
    if TS:
        e("s_mov_b64 exec, -1\ns_waitcnt lgkmcnt(0)")
        e(f"s_mul_i32 s4, s2, 5\ns_add_u32 s4, s4, s3\ns_lshl_b32 s4, s4, 7\ns_add_u32 s4, s4, {WS_TS}\ns_memrealtime s[6:7]\nv_lshlrev_b32 v1, 2, v0\nv_mov_b32 v2, 0")
        for i in range(18): e(f"v_writelane_b32 v2, s{64+2*i}, {i}")
        e("s_waitcnt lgkmcnt(0)\nv_writelane_b32 v2, s6, 18")
        e(f"s_mov_b64 exec, 0xffffffff\nbuffer_store_dword v2, v1, s[40:43], s4 offen")
    e("L_end:\ns_endpgm")
    for c in sorted(set(fails)):
        e(f"L_fail{c}:\ns_movk_i32 s4, {c}\ns_branch L_fail")
    if fails:
        e("L_fail:\ns_mov_b64 exec, 1\ns_mov_b32 s28, s24\ns_mov_b32 s29, s25\ns_mov_b32 s30, 256\ns_mov_b32 s31, 0x20000\ns_lshl_b32 s5, s4, 2\nv_mov_b32 v1, 1\nv_mov_b32 v2, s5\nbuffer_atomic_add v1, v2, s[28:31], 0 offen\ns_endpgm")

    lines = a.L
    head = '.amdgcn_target "amdgcn-amd-amdhsa--gfx950"\n.text\n'
    lines = finish(lines, cfg, head)
    hdr = open("cdna_kernels/" + NAME + ".s.ref").read().split("; @launch")[0]
    out = hdr + f"; @launch grid=(256,1,1) block=(320,1,1) lds={LDS_BYTES}\n" + head
    out += f".globl {NAME}_kernel\n.p2align 12\n.type {NAME}_kernel,@function\n{NAME}_kernel:\n" + "\n".join(lines) + "\n"
    out += f""".section .rodata,"a"
.p2align 6
.amdhsa_kernel {NAME}_kernel
  .amdhsa_next_free_vgpr 256
  .amdhsa_next_free_sgpr 102
  .amdhsa_accum_offset 256
  .amdhsa_group_segment_fixed_size 0
  .amdhsa_kernarg_size 96
  .amdhsa_user_sgpr_count 2
  .amdhsa_user_sgpr_kernarg_segment_ptr 1
  .amdhsa_system_sgpr_workgroup_id_x 1
.end_amdhsa_kernel
"""
    return out

def finish(lines, cfg, head):
    walk_at = lines.index("; WALK")
    body = [l for l in lines]
    body = pad_hazards(body)
    if not cfg["pads"]:
        return [l for l in body if not l.startswith(";")]
    def build(npads):
        tree = []
        def rec(lo, hi):
            if hi - lo == 1: tree.append(f"s_branch L_pad{lo}"); return
            mid = (lo + hi) // 2
            tree.append(f"s_cmp_lt_u32 s99, {mid}"); tree.append(f"s_cbranch_scc0 L_wt{mid}")
            rec(lo, mid); tree.append(f"L_wt{mid}:"); rec(mid, hi)
        pre = ["s_and_b32 s99, s53, 15", "s_lshl2_add_u32 s99, s99, s3", f"s_cmp_ge_u32 s99, {npads}", "s_cbranch_scc1 L_back", "s_mov_b64 exec, 0"]
        rec(0, npads)
        return ["; NOPAD_ON"] + pre + tree + ["L_back:", "s_mov_b64 exec, -1", "; NOPAD_OFF"]
    npads = 32
    for _ in range(6):
        i = body.index("; WALK")
        cur = body[:i] + build(npads) + body[i+1:]
        sz = sizes_of([l if not l.startswith(".") else "" for l in cur] + [f"L_pad{k}:" for k in range(npads)], head + "kstart:\n", "")[:len(cur)]
        out = []; off = 0; nxt = None; k = 0; nop = False; after_walk = False
        step = cfg["padstep"]
        for l, s in zip(cur, sz):
            if l == "; NOPAD_ON": nop = True
            if l == "; NOPAD_OFF": nop = False
            if l == "L_back:": after_walk = True; nxt = (off // step + 1) * step
            if after_walk and s and off >= nxt and not nop:
                out.append(f"L_pad{k}:"); out.append("s_cbranch_execz L_back"); off += 4; k += 1
                nxt = (off // step + 1) * step
            out.append(l); off += s
        if k == npads: break
        npads = k
    assert k == npads and npads <= 64, (k, npads)
    cfg["_size"] = off; cfg["_npads"] = npads
    sys.stderr.write(f"code bytes {off}, pads {npads}\n")
    return [l for l in out if not l.startswith(";")]

if __name__ == "__main__":
    import chk, json
    kw = json.loads(sys.argv[2]) if len(sys.argv) > 2 else {}
    s = gen(**kw)
    open(sys.argv[1], "w").write(s)
    print(chk.check(s))
```

```python
import sys, struct
sys.path.insert(0, "work")
from asmlib import *
NAME = "parallel_sum__compressed_kv_cla__dense_activation_silu__decode"
def f2h(x): return hex(struct.unpack("<I", struct.pack("<f", x))[0])

WS_EPOCH = 0; WS_S1 = 0x10000; WS_S2 = 0x60000; WS_MM = 0x90000; WS_ML = 0x98000; WS_S4 = 0xA0000
WS_S5 = 0x100000; WS_S3 = 0x200000; WS_TS = 0x800000; WS_SIZE = 0x900000
L_CKV = 0; L_WUV = 0; L_W1 = 16384; L_W2 = 53248; L_WO = 90112
L_WQ = 131072; L_QA = 131072; L_XN = 151552; L_QB = 153856; L_PB = 153856; L_MX = 157952; L_LB = 158208
L_FL = 159360; L_DUM = 159424; LDS_BYTES = 159744

DEF = dict(win=12, ts=0, stop=99, clean_after=2, pads=1, padstep=512, dbg=0)

def gen(**kw):
    cfg = dict(DEF); cfg.update(kw)
    W = cfg["win"]; TS = cfg["ts"]; STOP = cfg["stop"]
    a = Asm(); e = a
    sX, sS, sJ, sHH, sH, sHGT, sHGA, sB, sSPLIT, sHL, sSPIN, sT0 = range(52, 64)
    sT1, sT2, sT3, sT4, sT5, sT6, sT7 = range(4, 11)
    sM0, sM1 = 12, 14
    sHI = 16
    sC0, sC1 = 17, 18
    def ts(i):
        if TS: e(f"s_memrealtime s[{64+2*i}:{65+2*i}]")
    def srd(d, p, size, add=None):
        if add is None: e(f"s_mov_b32 s{d}, s{p}\ns_mov_b32 s{d+1}, s{p+1}")
        else: e(f"s_add_u32 s{d}, s{p}, s{add}\ns_addc_u32 s{d+1}, s{p+1}, 0")
        e(f"s_mov_b32 s{d+2}, {hex(size)}\ns_mov_b32 s{d+3}, 0x20000")
    def setexec(m):
        lo = m & 0xffffffff; hi = m >> 32
        if m == (1 << 64) - 1: e("s_mov_b64 exec, -1")
        elif hi == 0: e(f"s_mov_b64 exec, {hex(lo)}" if lo < 0x80000000 else f"s_mov_b32 exec_lo, {hex(lo)}\ns_mov_b32 exec_hi, 0")
        else: e(f"s_mov_b32 exec_lo, {hex(lo)}\ns_mov_b32 exec_hi, {hex(hi)}")
    def setmask(s, m):
        lo = m & 0xffffffff; hi = m >> 32
        e(f"s_mov_b32 s{s}, {hex(lo)}")
        e(f"s_mov_b32 s{s+1}, s{s}" if hi == lo else f"s_mov_b32 s{s+1}, {hex(hi)}")
    rep16 = lambda m: m * 0x0001000100010001
    fails = []
    def spin_check(code):
        if cfg["dbg"]:
            l = f"L_fail{code}"; fails.append(code)
        else: l = "L_end"
        e(f"s_sub_u32 s{sSPIN}, s{sSPIN}, 1\ns_cbranch_scc1 {l}")
    nopad_on = lambda: e("; NOPAD_ON")
    nopad_off = lambda: e("; NOPAD_OFF")
    vLANE, vG, vN, vTAG, vFW, vFR, vMW, vML, vTHR, vFV, vL16 = range(0, 11)
    def setflag(val): e(f"v_mov_b32 v{vFV}, {val}\nds_write_b32 v{vFW}, v{vFV}")
    def thr(stage, land):
        e(f"v_and_b32 v{vTHR}, {stage}, v{vMW}")
        if land not in (0, "0"): e(f"v_and_or_b32 v{vTHR}, v{vML}, {land}, v{vTHR}")
    def waitflags(code):
        l = a.lab("L_wf")
        e(f"{l}:\nds_read_b32 v{vFV}, v{vFR}\ns_waitcnt lgkmcnt(0)\nv_cmp_gt_u32 vcc, v{vTHR}, v{vFV}")
        spin_check(code)
        e(f"s_cbranch_vccnz {l}")
    def check_regs(rs, kind):
        nopad_on()
        for r in rs:
            e(f"v_cmpx_eq_u32 vcc, v{r}, v{vTAG}" if kind == "tag" else f"v_cmpx_ne_u32 vcc, -1, v{r}")
        e("s_cmp_eq_u64 exec, -1\ns_mov_b64 exec, -1")
        nopad_off()
    def dpp(op, d, s0, s1, ctl): e(f"{op}_dpp v{d}, v{s0}, v{s1} {ctl} row_mask:0xf bank_mask:0xf")
    QP1 = "quad_perm:[1,0,3,2]"; QP2 = "quad_perm:[2,3,0,1]"
    def mfma32(d, A, B, C=None): e(f"v_mfma_f32_16x16x32_bf16 {vr(d,4)}, {vr(A,4)}, {vr(B,4)}, {vr(C,4) if C is not None else 0}")
    def mfma16(d, A, B, C=None): e(f"v_mfma_f32_16x16x16_bf16 {vr(d,4)}, {vr(A,2)}, {vr(B,2)}, {vr(C,4) if C is not None else 0}")
    def cvtpk(d, x, y): e(f"v_cvt_pk_bf16_f32 v{d}, v{x}, v{y}")

    order = []
    for gidx in range(8):
        if gidx == cfg["clean_after"]: order.append("CLEAN")
        order.append(f"G{gidx}")
    if cfg["clean_after"] >= 8: order.append("CLEAN")
    order += ["WUV", "W1", "W2", "WO"]
    MS = {k: i + 1 for i, k in enumerate(order)}

    ts(0)
    e("s_cmp_ge_u32 s2, 256\ns_cbranch_scc1 L_end")
    e("s_load_dwordx16 s[4:19], s[0:1], 0\ns_load_dwordx8 s[20:27], s[0:1], 64")
    e(f"v_lshrrev_b32 v1, 6, v0\nv_and_b32 v0, 63, v0\nv_readfirstlane_b32 s3, v1")
    e(f"s_and_b32 s{sX}, s2, 7\ns_lshr_b32 s{sS}, s2, 3\ns_and_b32 s{sJ}, s{sS}, 7\ns_bfe_u32 s{sHGT}, s2, 0x10006\ns_lshr_b32 s{sHH}, s2, 7")
    e(f"s_lshl1_add_u32 s{sHL}, s{sX}, s{sHH}\ns_lshl4_add_u32 s{sH}, s{sHGT}, s{sHL}\ns_xor_b32 s{sHGA}, s{sHGT}, 1\ns_lshr_b32 s{sB}, s{sX}, 2")
    e(f"s_and_b32 s{sT0}, s{sX}, 3\ns_lshl1_add_u32 s{sT0}, s{sT0}, s{sHH}\ns_lshl3_add_u32 s{sSPLIT}, s{sT0}, s{sJ}")
    e(f"s_mov_b32 s{sSPIN}, 0x40000")
    e(f"v_lshlrev_b32 v{vL16}, 4, v0\nv_lshrrev_b32 v{vG}, 4, v0\nv_and_b32 v{vN}, 15, v0")
    e(f"s_lshl_b32 s{sT0}, s3, 2\ns_add_u32 s{sT0}, s{sT0}, {L_FL}\nv_lshlrev_b32 v{vFW}, 2, v0\nv_add_u32 v{vFW}, {L_DUM}, v{vFW}\nv_writelane_b32 v{vFW}, s{sT0}, 0")
    e(f"v_and_b32 v{vFV}, 7, v0\nv_lshlrev_b32 v{vFR}, 2, v{vFV}\nv_add_u32 v{vFR}, {L_FL}, v{vFR}")
    e(f"v_cmp_gt_u32 vcc, 4, v{vFV}\nv_cndmask_b32 v{vMW}, 0, -1, vcc\nv_cmp_eq_u32 vcc, 4, v{vFV}\nv_cndmask_b32 v{vML}, 0, -1, vcc")
    setflag(0)
    e("s_cmp_eq_u32 s3, 4\ns_cbranch_scc1 L_loader")

    sWV = 3
    vXO = 11
    e(f"v_lshrrev_b32 v12, 5, v0\nv_and_b32 v13, 31, v0\nv_mul_u32_u24 v12, 0x480, v12\nv_mad_u32_u24 v{vXO}, v13, 36, v12")
    e("v_lshrrev_b32 v12, 2, v0\nv_lshlrev_b32 v14, 13, v12\nv_lshrrev_b32 v12, 4, v0\nv_and_b32 v12, 2, v12\nv_and_b32 v13, 3, v0\nv_xor_b32 v12, v12, v13\nv_lshl_add_u32 v14, v12, 4, v14")
    e(f"v_lshlrev_b32 v15, 13, v{vN}\nv_lshl_add_u32 v15, v{vG}, 4, v15")
    e(f"s_lshl3_add_u32 s{sT0}, s{sH}, s{sJ}")
    e(f"s_lshl_b32 s28, s{sT0}, 10\ns_lshl_b32 s29, s3, 8\ns_add_u32 s28, s28, s29\ns_add_u32 s28, s28, {WS_S4}\nv_add_u32 v16, s28, v{vL16}")
    e(f"s_lshl_b32 s28, s{sT0}, 6\ns_lshl4_add_u32 s28, s3, s28\ns_add_u32 s29, s28, {WS_MM}\ns_add_u32 s28, s28, {WS_ML}\nv_writelane_b32 v16, s29, 16\nv_writelane_b32 v16, s28, 17")
    for i in range(4): e(f"v_mov_b32 v{28+i}, -1")
    e(f"s_mul_i32 s96, s{sJ}, {72*8192}\ns_lshl_b32 s97, s{sH}, 8\ns_add_u32 s96, s96, s97\ns_lshl_b32 s98, s3, 6\ns_add_u32 s96, s96, s98")
    e(f"s_lshl2_add_u32 s98, s{sJ}, s3\ns_lshl_b32 s98, s98, 17\ns_add_u32 s97, s97, s98")
    e(f"s_mul_i32 s98, s3, 5120\ns_add_u32 s98, s98, {L_WQ}")
    e("s_waitcnt lgkmcnt(0)")
    ts(1)
    X, WQ, WUK, WS, OUT = 28, 32, 36, 40, 44
    srd(X, 4, 2304)
    XR = 32
    e(f"buffer_load_dwordx4 {vr(XR,4)}, v{vXO}, s[28:31], 0 offen\nbuffer_load_dwordx4 {vr(XR+4,4)}, v{vXO}, s[28:31], 0 offen offset:16\nbuffer_load_dword v{XR+8}, v{vXO}, s[28:31], 0 offen offset:32")
    srd(WS, 26, WS_SIZE)
    e(f"buffer_load_dword v{vTAG}, off, s[40:43], 0 sc1")
    srd(WQ, 8, 4718592)
    setexec(0x3FFFF)
    e(f"buffer_store_dwordx4 v[28:31], v16, s[40:43], 0 offen sc1")
    e("s_mov_b64 exec, -1")
    for it in range(5):
        e(f"s_mov_b32 m0, s98" if it == 0 else "s_add_u32 m0, m0, 0x400")
        if it == 4: setexec(0xFFFFFFFF)
        else: e("s_nop 0")
        e(f"buffer_load_dwordx4 v14, s[32:35], s96 offen lds")
        if it < 4: e(f"s_add_u32 s96, s96, {16*8192}")
    e("s_mov_b64 exec, -1")
    srd(WUK, 10, 4194304)
    WUKR = 112
    for t in range(4): e(f"buffer_load_dwordx4 {vr(WUKR+4*t,4)}, v15, s[36:39], s97 offen offset:{64*t}")
    srd(OUT, 22, 2304)
    e("s_barrier")
    e("; WALK")
    e(f"s_mov_b32 s{sHI}, 0xffff0000")
    vTA0, vTA1, vTA2, vXB = 17, 18, 19, 20
    e(f"v_bfe_u32 v12, v0, 2, 2\nv_and_b32 v13, 3, v0\nv_lshlrev_b32 v13, 3, v13\nv_lshl_add_u32 v13, v12, 6, v13\nv_add_u32 v13, s98, v13")
    e(f"v_add_u32 v{vTA2}, 0x1000, v13\nv_lshl_add_u32 v{vTA0}, v{vG}, 9, v13\nv_and_b32 v12, 1, v{vG}\nv_lshl_add_u32 v{vTA0}, v12, 5, v{vTA0}\nv_xor_b32 v{vTA1}, 32, v{vTA0}")
    e(f"v_and_b32 v12, 1, v{vN}\nv_mul_u32_u24 v12, 0x480, v12\nv_lshl_add_u32 v{vXB}, v{vG}, 4, v12\nv_add_u32 v{vXB}, {L_XN}, v{vXB}")
    e(f"s_mul_i32 s{sT1}, s{sJ}, 144\nv_add_u32 v21, s{sT1}, v{vXB}")
    e(f"v_add_u32 v{vXO}, {L_XN}, v{vXO}")
    XB = 152
    for i in range(4): e(f"v_mov_b32 v{XB+8+i}, 0")
    XF = 42
    e("s_waitcnt vmcnt(11)")
    ts(2)
    for k in range(9): e(f"v_lshlrev_b32 v{XF+2*k}, 16, v{XR+k}\nv_and_b32 v{XF+2*k+1}, s{sHI}, v{XR+k}")
    e(f"v_pk_add_f32 v[60:61], {vr(XF,2)}, {vr(XF+2,2)}")
    for k in range(2, 9): e(f"v_pk_add_f32 v[60:61], v[60:61], {vr(XF+2*k,2)}")
    e("v_add_f32 v60, v60, v61")
    def reduce32(v, t):
        for c in (QP1, QP2, "row_half_mirror", "row_mirror"): dpp("v_add_f32", v, v, v, c)
        e(f"v_mov_b32 v{t}, v{v}\nv_permlane16_swap_b32 v{t}, v{v}\nv_add_f32 v{v}, v{v}, v{t}")
    def bfr(v): e(f"v_cvt_pk_bf16_f32 v{v}, v{v}, v{v}\nv_and_b32 v{v}, s{sHI}, v{v}")
    reduce32(60, 61)
    e(f"v_mul_f32 v60, {f2h(1/576)}, v60")
    for k in range(9):
        e(f"v_pk_add_f32 v[22:23], {vr(XF+2*k,2)}, v[60:61] op_sel_hi:[1,0] neg_lo:[0,1] neg_hi:[0,1]")
        e("v_pk_mul_f32 v[62:63], v[22:23], v[22:23]" if k == 0 else "v_pk_fma_f32 v[62:63], v[22:23], v[22:23], v[62:63]")
    e("v_add_f32 v62, v62, v63")
    reduce32(62, 63)
    e(f"v_mul_f32 v62, {f2h(1/576)}, v62"); bfr(62)
    e("v_add_f32 v62, 0x3727c5ac, v62"); bfr(62)
    e("v_sqrt_f32 v62, v62"); bfr(60); bfr(62)
    e("v_rcp_f32 v62, v62")
    for k in range(9):
        e(f"v_pk_add_f32 {vr(XF+2*k,2)}, {vr(XF+2*k,2)}, v[60:61] op_sel_hi:[1,0] neg_lo:[0,1] neg_hi:[0,1]")
        cvtpk(XR+k, XF+2*k, XF+2*k+1)
    for k in range(9): e(f"v_lshlrev_b32 v{XF+2*k}, 16, v{XR+k}\nv_and_b32 v{XF+2*k+1}, s{sHI}, v{XR+k}")
    for k in range(9):
        e(f"v_pk_mul_f32 {vr(XF+2*k,2)}, {vr(XF+2*k,2)}, v[62:63] op_sel_hi:[1,0]")
        cvtpk(XR+k, XF+2*k, XF+2*k+1)
        if k & 1: e(f"ds_write2_b32 v{vXO}, v{XR+k-1}, v{XR+k} offset0:{k-1} offset1:{k}")
    e(f"ds_write_b32 v{vXO}, v{XR+8} offset:32")
    e(f"ds_read_b128 {vr(XB,4)}, v21\nds_read_b128 {vr(XB+4,4)}, v21 offset:64")
    setexec(0xFFFF)
    e(f"ds_read_b128 {vr(XB+8,4)}, v21 offset:128")
    e("s_mov_b64 exec, -1")
    e(f"v_and_b32 v12, 1, v{vN}\nv_lshlrev_b32 v22, 9, v12\nv_bfe_u32 v12, v{vN}, 1, 1\nv_lshl_add_u32 v12, v12, 2, v{vG}\nv_lshl_add_u32 v22, v12, 4, v22")
    e(f"s_lshl3_add_u32 s{sT1}, s{sH}, s{sJ}\ns_lshl_b32 s{sT1}, s{sT1}, 10\ns_lshl_b32 s{sT2}, s3, 7\ns_add_u32 s{sT1}, s{sT1}, s{sT2}\ns_add_u32 s{sT1}, s{sT1}, {WS_S1}")
    e(f"s_lshl_b32 s{sT2}, s{sH}, 13\ns_lshl_b32 s{sT3}, s3, 11\ns_add_u32 s{sT2}, s{sT2}, s{sT3}\ns_add_u32 s{sT2}, s{sT2}, {WS_S1}")
    setmask(sM0, rep16(0xCCCC))
    e("s_waitcnt vmcnt(4)")
    ts(3)
    QA_ = 128; ACC = 64
    for st in range(3):
        for T in range(2):
            for hf in range(2):
                d = QA_ + 8*st + 4*T + 2*hf
                if st < 2: e(f"ds_read_b64_tr_b16 {vr(d,2)}, v{vTA0+T} offset:{st*2048+hf*256}")
                else: e(f"ds_read_b64_tr_b16 {vr(d,2)}, v{vTA2} offset:{hf*256+T*32}")
    e(f"s_mov_b32 s{sT3}, 1664525\nv_mul_lo_u32 v{vTAG}, v{vTAG}, s{sT3}\nv_add_u32 v{vTAG}, 0x3c6ef35f, v{vTAG}")
    for st in range(3):
        e(f"s_waitcnt lgkmcnt({8-4*st})")
        for T in range(2): mfma32(ACC+4*T, QA_+8*st+4*T, XB+4*st, ACC+4*T if st else None)
    e(f"v_mov_b32 v25, v{vTAG}\nv_mov_b32 v27, v{vTAG}")
    cvtpk(12, ACC, ACC+1); cvtpk(13, ACC+2, ACC+3); cvtpk(24, ACC+4, ACC+5); cvtpk(26, ACC+6, ACC+7)
    e(f"v_cndmask_b32 v24, v12, v24, s[{sM0}:{sM0+1}]\nv_cndmask_b32 v26, v13, v26, s[{sM0}:{sM0+1}]")
    setexec(rep16(0xF))
    e(f"buffer_store_dwordx4 v[24:27], v22, s[40:43], s{sT1} offen sc1")
    e("s_mov_b64 exec, -1")
    ts(4)
    if STOP <= 1: e("s_branch L_done")
    G = 96
    e(f"v_lshrrev_b32 v12, 5, v0\nv_lshlrev_b32 v12, 3, v12\ns_lshl_b32 s{sT3}, s3, 1\nv_add_u32 v12, s{sT3}, v12")
    e(f"v_bfe_u32 v13, v0, 1, 4\nv_xor_b32 v13, v13, v12\nv_lshlrev_b32 v13, 4, v13\nv_lshl_add_u32 v13, v12, 8, v13\nv_and_b32 v12, 1, v0\nv_lshl_add_u32 v13, v12, 3, v13")
    e(f"v_add_u32 v22, {L_QB}, v13\nv_xor_b32 v23, 16, v22\nv_add_u32 v23, 0x100, v23")
    e(f"v_xor_b32 v12, v{vG}, v{vN}\nv_lshlrev_b32 v12, 4, v12\nv_lshl_add_u32 v12, v{vN}, 8, v12\nv_add_u32 v12, {L_QB}, v12\nv_xor_b32 v13, 64, v12\nv_xor_b32 v14, 0x80, v12\nv_xor_b32 v15, 0xc0, v12")
    e(f"v_lshrrev_b32 v16, 3, v{vN}\nv_lshlrev_b32 v16, 16, v16\nv_lshl_add_u32 v16, v{vG}, 4, v16")
    e(f"s_lshl4_add_u32 s{sT1}, s{sHGT}, s{sHL}\ns_lshl_b32 s{sT1}, s{sT1}, 11\ns_lshl2_add_u32 s{sT3}, s{sJ}, s3\ns_lshl_b32 s{sT3}, s{sT3}, 6\ns_add_u32 s{sT1}, s{sT1}, s{sT3}\ns_add_u32 s{sT1}, s{sT1}, {WS_S2}")
    l = a.lab("L_s1")
    e(f"{l}:\nbuffer_load_dwordx4 {vr(G,4)}, v{vL16}, s[40:43], s{sT2} offen sc1\nbuffer_load_dwordx4 {vr(G+4,4)}, v{vL16}, s[40:43], s{sT2} offen offset:1024 sc1")
    spin_check(1)
    e("s_waitcnt vmcnt(0)")
    check_regs([G+1, G+3, G+5, G+7], "tag")
    e(f"s_cbranch_scc0 {l}")
    ts(5)
    e(f"ds_write2_b32 v22, v{G}, v{G+2} offset1:1\nds_write2_b32 v23, v{G+4}, v{G+6} offset1:1")
    setflag(1)
    thr(1, MS["CLEAN"])
    waitflags(2)
    QB_ = 32
    for t in range(4): e(f"ds_read_b128 {vr(QB_+4*t,4)}, v{12+t}")
    e(f"s_mov_b32 s{sC0}, {f2h(128**-0.5*1.4426950408889634)}")
    for t in range(4):
        e(f"s_waitcnt lgkmcnt({3-t})")
        mfma32(ACC, WUKR+4*t, QB_+4*t, ACC if t else None)
    e(f"v_mov_b32 v25, v{vTAG}\nv_mov_b32 v27, v{vTAG}")
    for c in (QP1, QP2, "row_half_mirror"):
        for r in range(4): dpp("v_add_f32", ACC+r, ACC+r, ACC+r, c)
    for r in range(4): e(f"v_mul_f32 v{ACC+r}, s{sC0}, v{ACC+r}")
    cvtpk(24, ACC, ACC+1); cvtpk(26, ACC+2, ACC+3)
    setexec(rep16(0x0101))
    e(f"buffer_store_dwordx4 v[24:27], v16, s[40:43], s{sT1} offen sc1")
    e("s_mov_b64 exec, -1")
    ts(6)
    if STOP <= 2: e("s_branch L_done")
    KV = 128
    vKA = 12
    e(f"v_and_b32 v25, 7, v{vN}\nv_lshlrev_b32 v25, 1, v25\nv_bfe_u32 v26, v{vN}, 2, 1\nv_or_b32 v25, v25, v26\nv_xor_b32 v25, v25, v{vG}\nv_lshlrev_b32 v25, 4, v25")
    e(f"s_lshl_b32 s{sT1}, s3, 15\nv_lshl_add_u32 v25, v{vN}, 10, v25\nv_add_u32 v{vKA}, s{sT1}, v25\nv_xor_b32 v{vKA+1}, 64, v{vKA}\nv_xor_b32 v{vKA+2}, 0x80, v{vKA}\nv_xor_b32 v{vKA+3}, 0xc0, v{vKA}")
    e(f"v_xor_b32 v25, v{vG}, v{vN}\nv_lshlrev_b32 v25, 4, v25\nv_lshl_add_u32 v25, v{vN}, 10, v25\nv_add_u32 v16, {L_QA}, v25\nv_xor_b32 v17, 64, v16\nv_xor_b32 v18, 0x80, v16\nv_xor_b32 v19, 0xc0, v16")
    e(f"s_lshl_b32 s{sT1}, s3, 2\nv_lshrrev_b32 v25, 1, v0\nv_xor_b32 v25, s{sT1}, v25\nv_lshlrev_b32 v25, 4, v25\nv_and_b32 v26, 1, v0\nv_lshl_add_u32 v25, v26, 3, v25\ns_lshl_b32 s{sT1}, s3, 12\ns_add_u32 s{sT1}, s{sT1}, {L_QA}\nv_add_u32 v21, s{sT1}, v25")
    for hh in range(1, 4): e(f"v_xor_b32 v{21+hh}, {16*hh}, v21\nv_add_u32 v{21+hh}, {hex(1024*hh)}, v{21+hh}")
    e(f"s_lshl1_add_u32 s{sT2}, s{sB}, s{sHGA}\ns_lshl_b32 s{sT2}, s{sT2}, 15\ns_lshl_b32 s{sT3}, s3, 13\ns_add_u32 s{sT2}, s{sT2}, s{sT3}\ns_add_u32 s{sT2}, s{sT2}, {WS_S2}\ns_add_u32 s{sT3}, s{sT2}, 0x1000")
    ca = cfg["clean_after"]
    e(f"s_add_u32 s{sT1}, s3, 1")
    if ca < 4: e(f"s_cmp_ge_u32 s3, {ca}\ns_addc_u32 s{sT1}, s{sT1}, 0")
    thr(0, f"s{sT1}")
    waitflags(3)
    def kread(T, t): return f"ds_read_b128 {vr(KV+64*T+4*t,4)}, v{vKA+(t&3)} offset:{T*16384+(t>>2)*256}"
    for t in range(16): e(kread(0, t))
    l = a.lab("L_s2")
    e(f"{l}:")
    for i in range(8): e(f"buffer_load_dwordx4 {vr(G+4*i,4)}, v{vL16}, s[40:43], s{sT2+(i>>2)} offen offset:{(i&3)*1024} sc1")
    spin_check(4)
    nopad_on()
    for i in range(8):
        e(f"s_waitcnt vmcnt({7-i})\nv_cmpx_eq_u32 vcc, v{G+4*i+1}, v{vTAG}\nv_cmpx_eq_u32 vcc, v{G+4*i+3}, v{vTAG}")
    e("s_cmp_eq_u64 exec, -1\ns_mov_b64 exec, -1")
    nopad_off()
    e(f"s_cbranch_scc0 {l}")
    ts(7)
    for i in range(8):
        e(f"ds_write2_b32 v{21+(i>>1)}, v{G+4*i}, v{G+4*i+2} offset0:{(i&1)*128} offset1:{(i&1)*128+1}")
    setflag(2)
    thr(0, MS["G7"])
    waitflags(5)
    for t in range(16): e(kread(1, t))
    e(f"v_bfe_u32 v25, v0, 2, 2\nv_and_b32 v26, 1, v{vG}\nv_lshl_add_u32 v26, v26, 2, v25\nv_lshlrev_b32 v27, 1, v26\nv_lshrrev_b32 v26, 2, v26\nv_or_b32 v27, v27, v26")
    e(f"v_bfe_u32 v26, v0, 1, 1\nv_xor_b32 v27, v27, v26\nv_lshlrev_b32 v27, 4, v27\nv_and_b32 v26, 1, v0\nv_lshl_add_u32 v27, v26, 3, v27")
    e(f"v_lshl_add_u32 v25, v{vG}, 2, v25\nv_lshl_add_u32 v27, v25, 10, v27\ns_lshl_b32 s{sT1}, s3, 8\nv_add_u32 v21, s{sT1}, v27")
    thr(2, 0)
    waitflags(6)
    ts(8)
    BF = [32+4*t for t in range(8)] + [96+4*t for t in range(8)]
    for ct in range(1, 8): e(f"v_xor_b32 v{21+ct}, {hex(32*ct)}, v21")
    for t in range(16): e(f"ds_read_b128 {vr(BF[t],4)}, v{16+(t&3)} offset:{(t>>2)*256}")
    vslot = []
    for t in range(16): vslot += [KV+4*t, KV+64+4*t]
    vfr = {}
    k = 0
    for kw in (0, 1, 2, 3):
        for ct in range(8):
            vfr[(ct, kw)] = vslot[k]; k += 1
    def vread(ct, kw, T): return f"ds_read_b64_tr_b16 {vr(vfr[(ct,kw)]+2*T,2)}, v{21+ct} offset:{(kw&1)*32768+T*16384}"
    vreads = [vread(ct, kw, T) for kw in range(4) for ct in range(8) for T in range(2)]
    for t in range(16):
        if t < 8: e(f"s_waitcnt lgkmcnt({15-t})" if t < 7 else "s_waitcnt lgkmcnt(0)")
        mfma32(ACC, KV+4*t, BF[t], ACC if t else None)
        mfma32(ACC+4, KV+64+4*t, BF[t], ACC+4 if t else None)
        if t >= 8:
            for x in vreads[4*(t-8):4*(t-8)+4]: e(x)
    for ct in range(8): e(f"v_add_u32 v{21+ct}, 0x10000, v{21+ct}")
    sm = Asm()
    s_ = sm
    s_(f"v_max3_f32 v72, v64, v65, v66\nv_max3_f32 v73, v67, v68, v69\nv_max3_f32 v72, v72, v70, v71\nv_max_f32 v72, v72, v73")
    s_("v_mov_b32 v73, v72\nv_permlane16_swap_b32 v73, v72\nv_max_f32 v72, v72, v73\nv_mov_b32 v73, v72\nv_permlane32_swap_b32 v73, v72\nv_max_f32 v72, v72, v73\nv_ceil_f32 v72, v72")
    for r in range(8): s_(f"v_sub_f32 v{64+r}, v{64+r}, v72")
    for r in range(8): s_(f"v_exp_f32 v{64+r}, v{64+r}")
    for r in range(4): s_(f"v_cvt_pk_bf16_f32 v{76+r}, v{64+2*r}, v{65+2*r}")
    for x in interleave(sm.L, vreads[32:], start=2, every=1, per=2): e(x)
    e(f"s_lshl_b32 s{sT1}, s3, 10\ns_add_u32 s{sT1}, s{sT1}, {L_PB}\nv_add_u32 v12, s{sT1}, v{vL16}\nds_write_b128 v12, v[76:79]")
    e(f"s_lshl_b32 s{sT1}, s3, 2\nv_lshlrev_b32 v13, 4, v{vN}\nv_add_u32 v13, {L_MX}, v13\nv_add_u32 v14, s{sT1}, v13\nds_write_b32 v14, v72")
    setflag(3)
    e(f"v_add_u32 v12, {L_PB}, v{vL16}")
    e(f"v_lshlrev_b32 v15, 9, v{vN}\ns_lshl_b32 s{sT1}, s{sHGA}, 13\ns_lshl_b32 s{sT2}, s{sB}, 8\ns_add_u32 s{sT1}, s{sT1}, s{sT2}\ns_lshl2_add_u32 s{sT1}, s{sSPLIT}, s{sT1}\ns_add_u32 s{sT2}, s{sT1}, {WS_ML}\ns_add_u32 s{sT1}, s{sT1}, {WS_MM}")
    e(f"s_lshl_b32 s{sT3}, s3, 2\ns_mov_b64 s[{sM1}:{sM1+1}], 15\ns_lshl_b64 s[{sM1}:{sM1+1}], s[{sM1}:{sM1+1}], s{sT3}")
    e(f"v_lshlrev_b32 v16, 17, v{vN}\nv_lshl_add_u32 v16, v{vG}, 4, v16")
    e(f"s_lshl_b32 s{sT3}, s{sHGA}, 21\ns_lshl_b32 s{sT4}, s3, 15\ns_add_u32 s{sT3}, s{sT3}, s{sT4}\ns_lshl_b32 s{sT4}, s{sB}, 6\ns_add_u32 s{sT4}, s{sT4}, s{sSPLIT}\ns_lshl_b32 s{sT4}, s{sT4}, 7\ns_add_u32 s{sT3}, s{sT3}, s{sT4}\ns_add_u32 s{sT3}, s{sT3}, {WS_S3}\ns_add_u32 s{sT4}, s{sT3}, 0x4000")
    thr(3, 0)
    waitflags(7)
    ts(9)
    PF = 32
    e(f"ds_read_b128 v[48:51], v13")
    for kw in range(4): e(f"ds_read_b128 {vr(PF+4*kw,4)}, v12 offset:{kw*1024}")
    setflag(4)
    e("s_waitcnt lgkmcnt(5)")
    e("v_max3_f32 v52, v48, v49, v50\nv_max_f32 v52, v52, v51")
    for kw in range(4): e(f"v_sub_f32 v{48+kw}, v52, v{48+kw}")
    for kw in range(4): e(f"v_cvt_u32_f32 v{48+kw}, v{48+kw}")
    for kw in range(4): e(f"v_min_u32 v{48+kw}, 0xff, v{48+kw}")
    e(f"s_mov_b32 s{sC0}, 0x800080")
    for kw in range(4): e(f"v_mul_u32_u24 v{48+kw}, s{sC0}, v{48+kw}")
    e("v_min_u32 v52, -2, v52")
    e(f"s_mov_b64 exec, s[{sM1}:{sM1+1}]\nbuffer_store_dword v52, v15, s[40:43], s{sT1} offen sc1\ns_mov_b64 exec, -1")
    for kw in range(4):
        e(f"s_waitcnt lgkmcnt({4-kw})")
        for r in range(4): e(f"v_pk_sub_u16 v{PF+4*kw+r}, v{PF+4*kw+r}, v{48+kw} clamp")
    for r in range(4): e(f"v_mov_b32 v{56+r}, 0x3f803f80")
    PK = 96
    def pack(tp):
        o = []
        for ee in range(2):
            acc = ACC + 4*(2*tp+ee)
            o += [f"v_cvt_pk_bf16_f32 v{PK+4*tp+2*ee}, v{acc}, v{acc+1}", f"v_cvt_pk_bf16_f32 v{PK+4*tp+2*ee+1}, v{acc+2}, v{acc+3}"]
        o += [f"v_min_u32 v{PK+4*tp+1}, -2, v{PK+4*tp+1}", f"v_min_u32 v{PK+4*tp+3}, -2, v{PK+4*tp+3}"]
        o += [f"buffer_store_dwordx4 {vr(PK+4*tp,4)}, v16, s[40:43], s{sT3+(tp>>1)} offen offset:{(tp&1)*64} sc1"]
        return o
    for tp in range(5):
        mf = Asm()
        for kw in range(4):
            if tp < 4:
                for ee in range(2):
                    ct = 2*tp+ee
                    mf(f"v_mfma_f32_16x16x32_bf16 {vr(ACC+4*ct,4)}, {vr(vfr[(ct,kw)],4)}, {vr(PF+4*kw,4)}, {vr(ACC+4*ct,4) if kw else 0}")
            else:
                mf(f"v_mfma_f32_16x16x32_bf16 v[52:55], v[56:59], {vr(PF+4*kw,4)}, {'v[52:55]' if kw else 0}")
        if tp == 0:
            for x in mf.L: e(x)
        else:
            m = mf.L; p = pack(tp-1)
            e(m[0]); e("s_nop 2"); e(m[1]); e("s_nop 2")
            rest = m[2:]; k = 0
            for x in rest:
                e(x)
                for y in p[k:k+3]: e(y)
                k += 3
            for y in p[k:]: e(y)
    e("v_min_u32 v52, -2, v52")
    e(f"s_mov_b64 exec, s[{sM1}:{sM1+1}]\nbuffer_store_dword v52, v15, s[40:43], s{sT2} offen sc1\ns_mov_b64 exec, -1")
    ts(10)
    if STOP <= 3: e("s_branch L_done")
    M4, M2, L2, PAY, AM, MK = 32, 36, 38, 40, 112, 56
    e(f"v_lshrrev_b32 v12, 3, v{vN}\nv_lshlrev_b32 v13, 8, v12\nv_lshl_add_u32 v14, v{vG}, 4, v13")
    e(f"v_and_b32 v15, 7, v{vN}\nv_lshl_add_u32 v13, v15, 5, v13\nv_lshl_add_u32 v13, v{vG}, 3, v13")
    e(f"v_lshlrev_b32 v16, 13, v12\nv_lshl_add_u32 v16, v{vG}, 9, v16\nv_lshl_add_u32 v16, v15, 4, v16")
    e(f"s_lshl_b32 s{sT1}, s{sH}, 9\ns_add_u32 s{sT2}, s{sT1}, {WS_ML}\ns_add_u32 s{sT1}, s{sT1}, {WS_MM}\ns_lshl_b32 s{sT3}, s3, 6\ns_add_u32 s{sT3}, s{sT3}, s{sT1}")
    e(f"s_lshl3_add_u32 s{sT4}, s{sH}, s{sJ}\ns_lshl_b32 s{sT4}, s{sT4}, 14\ns_lshl_b32 s{sT5}, s3, 11\ns_add_u32 s{sT4}, s{sT4}, s{sT5}\ns_add_u32 s{sT4}, s{sT4}, {WS_S3}")
    def ld_meta(): e(f"buffer_load_dwordx4 {vr(M4,4)}, v14, s[40:43], s{sT3} offen sc1\nbuffer_load_dwordx2 {vr(M2,2)}, v13, s[40:43], s{sT1} offen sc1")
    def ld_pay():
        for m in range(4): e(f"buffer_load_dwordx4 {vr(PAY+4*m,4)}, v16, s[40:43], s{sT4} offen offset:{128*m} sc1")
        e(f"buffer_load_dwordx2 {vr(L2,2)}, v13, s[40:43], s{sT2} offen sc1")
    ld_meta(); ld_pay()
    e(f"v_and_b32 v17, 1, v{vN}\nv_lshlrev_b32 v17, 4, v17\nv_mov_b32 v18, 0xffff\nv_lshlrev_b32 v17, v17, v18\nv_bfe_u32 v18, v{vN}, 1, 2")
    for r in range(4): e(f"v_cmp_eq_u32 vcc, {r}, v18\nv_cndmask_b32 v{MK+r}, 0, v17, vcc")
    e(f"v_bfe_u32 v19, v0, 2, 2\nv_and_b32 v21, 1, v{vG}\nv_lshl_add_u32 v21, v21, 2, v19\nv_lshlrev_b32 v21, 1, v21\nv_bfe_u32 v22, v0, 1, 1\ns_lshl_b32 s{sT5}, s3, 2\nv_or_b32 v22, s{sT5}, v22\nv_xor_b32 v21, v21, v22\nv_lshlrev_b32 v21, 4, v21")
    e(f"v_and_b32 v22, 1, v0\nv_lshl_add_u32 v21, v22, 3, v21\nv_lshl_add_u32 v19, v{vG}, 3, v19\nv_lshl_add_u32 v17, v19, 8, v21\nv_xor_b32 v18, 32, v17")
    if L_WUV: e(f"v_add_u32 v17, {L_WUV}, v17\nv_add_u32 v18, {L_WUV}, v18")
    e(f"s_mul_i32 s{sT5}, s3, 144\ns_add_u32 s{sT5}, s{sT5}, {L_LB}\nv_mul_u32_u24 v19, 0x240, v12\nv_bfe_u32 v21, v{vN}, 2, 1\nv_lshl_add_u32 v19, v21, 6, v19\nv_and_b32 v21, 1, v{vG}\nv_lshl_add_u32 v19, v21, 5, v19\nv_and_b32 v21, 3, v{vN}\nv_lshl_add_u32 v19, v21, 3, v19\nv_add_u32 v19, s{sT5}, v19")
    e(f"v_lshl_add_u32 v21, v12, 2, v21\nv_mul_u32_u24 v21, 0x90, v21\nv_lshl_add_u32 v21, v{vG}, 4, v21\nv_add_u32 v21, {L_LB}, v21")
    e(f"v_and_b32 v22, 1, v{vN}\nv_lshlrev_b32 v22, 10, v22\nv_lshl_add_u32 v22, v12, 6, v22\nv_lshl_add_u32 v22, v{vG}, 4, v22")
    e(f"s_lshl_b32 s{sT5}, s{sH}, 13\ns_lshl_b32 s{sT6}, s3, 11\ns_add_u32 s{sT5}, s{sT5}, s{sT6}\ns_lshl_b32 s{sT6}, s{sJ}, 7\ns_add_u32 s{sT5}, s{sT5}, s{sT6}\ns_add_u32 s{sT5}, s{sT5}, {WS_S4}")
    thr(0, MS["WUV"])
    waitflags(8)
    UV = 128
    for st in range(2):
        for T in range(2):
            for hf in range(2): e(f"ds_read_b64_tr_b16 {vr(UV+8*st+4*T+2*hf,2)}, v{17+T} offset:{st*8192+hf*1024}")
    e("s_waitcnt vmcnt(5)")
    l = a.lab("L_mm"); l2 = a.lab("L_mmok")
    e(f"{l}:")
    check_regs([M4, M4+1, M4+2, M4+3, M2, M2+1], "mark")
    e(f"s_cbranch_scc1 {l2}")
    ld_meta(); spin_check(9); e(f"s_waitcnt vmcnt(0)\ns_branch {l}\n{l2}:")
    ts(11)
    e(f"v_max_f32 v60, v{M2}, v{M2+1}")
    for c in (QP1, QP2, "row_half_mirror"): dpp("v_max_f32", 60, 60, 60, c)
    e("v_mov_b32 v61, v60\nv_permlane16_swap_b32 v61, v60\nv_max_f32 v60, v60, v61\nv_mov_b32 v61, v60\nv_permlane32_swap_b32 v61, v60\nv_max_f32 v60, v60, v61")
    for r in range(4): e(f"v_sub_f32 v{M4+r}, v{M4+r}, v60")
    for r in range(2): e(f"v_sub_f32 v{M2+r}, v{M2+r}, v60")
    for r in range(4): e(f"v_exp_f32 v{M4+r}, v{M4+r}")
    for r in range(2): e(f"v_exp_f32 v{M2+r}, v{M2+r}")
    for r in range(4): cvtpk(M4+r, M4+r, M4+r)
    for m in range(4):
        for r in range(4): e(f"v_and_b32 v{AM+4*m+r}, v{M4+m}, v{MK+r}")
    e("s_waitcnt vmcnt(0)")
    l = a.lab("L_s3"); l2 = a.lab("L_s3ok")
    e(f"{l}:")
    check_regs([PAY+4*m+r for m in range(4) for r in (1, 3)] + [L2, L2+1], "mark")
    e(f"s_cbranch_scc1 {l2}")
    ld_pay(); spin_check(10); e(f"s_waitcnt vmcnt(0)\ns_branch {l}\n{l2}:")
    ts(12)
    for m in range(4): mfma32(ACC, AM+4*m, PAY+4*m, ACC if m else None)
    e(f"v_mul_f32 v60, v{M2}, v{L2}\nv_fmac_f32 v60, v{M2+1}, v{L2+1}")
    dpp("v_add_f32", 60, 60, 60, QP1); dpp("v_add_f32", 60, 60, 60, QP2)
    cvtpk(62, ACC, ACC+1); cvtpk(63, ACC+2, ACC+3)
    setexec(0xFF00FF0000FF00FF)
    e("ds_write_b64 v19, v[62:63]")
    e("s_mov_b64 exec, -1")
    setflag(5)
    dpp("v_add_f32", 60, 60, 60, "row_half_mirror")
    e("v_mov_b32 v61, v60\nv_permlane16_swap_b32 v61, v60\nv_add_f32 v60, v60, v61\nv_mov_b32 v61, v60\nv_permlane32_swap_b32 v61, v60\nv_add_f32 v60, v60, v61\nv_rcp_f32 v60, v60")
    setmask(sM0, rep16(0xAAAA))
    thr(5, 0)
    waitflags(11)
    e("ds_read_b128 v[32:35], v21\nds_read_b128 v[36:39], v21 offset:64")
    for st in range(2):
        e(f"s_waitcnt lgkmcnt({1-st})")
        for T in range(2): mfma32(ACC+4*T, UV+8*st+4*T, 32+4*st, ACC+4*T if st else None)
    for c in (QP1, QP2):
        for r in range(8): dpp("v_add_f32", ACC+r, ACC+r, ACC+r, c)
    for r in range(4): e(f"v_cndmask_b32 v{ACC+r}, v{ACC+r}, v{ACC+4+r}, s[{sM0}:{sM0+1}]")
    for r in range(4): e(f"v_mul_f32 v{ACC+r}, v{ACC+r}, v60")
    for r in (1, 3): e(f"v_min_u32 v{ACC+r}, -2, v{ACC+r}")
    setexec(rep16(0x0303))
    e(f"buffer_store_dwordx4 {vr(ACC,4)}, v22, s[40:43], s{sT5} offen sc1")
    e("s_mov_b64 exec, -1")
    ts(13)
    if STOP <= 4: e("s_branch L_done")
    OA = 72
    for r in range(8): e(f"v_mov_b32 v{OA+r}, 0")
    e(f"v_bfe_u32 v13, v0, 2, 2\nv_lshl_add_u32 v13, v{vG}, 2, v13\nv_bfe_u32 v14, v13, 1, 2\nv_xor_b32 v14, s3, v14\nv_lshlrev_b32 v14, 5, v14\nv_and_b32 v15, 3, v0\nv_lshl_add_u32 v14, v15, 3, v14\nv_mul_u32_u24 v13, 0x480, v13\nv_add_u32 v12, v13, v14")
    e(f"v_add_u32 v16, {L_WO}, v12\nv_add_u32 v12, {L_W2}, v12")
    e(f"v_lshrrev_b32 v13, 1, v{vN}\nv_lshlrev_b32 v13, 7, v13\nv_and_b32 v15, 1, v{vN}\nv_lshl_add_u32 v13, v15, 6, v13\nv_lshl_add_u32 v13, v{vG}, 4, v13")
    e(f"s_lshl3_add_u32 s{sT1}, s{sH}, s{sJ}\ns_lshl_b32 s{sT1}, s{sT1}, 10\ns_add_u32 s{sT1}, s{sT1}, {WS_S4}")
    e(f"v_mul_u32_u24 v15, 5, v15\nv_lshrrev_b32 v14, 1, v{vN}\nv_add_u32 v14, v14, v15\nv_lshlrev_b32 v14, 16, v14\nv_lshl_add_u32 v14, v{vG}, 4, v14")
    e(f"s_lshl_b32 s{sT2}, s3, 14\ns_lshl_b32 s{sT3}, s2, 6\ns_add_u32 s{sT2}, s{sT2}, s{sT3}\ns_add_u32 s{sT2}, s{sT2}, {WS_S5}")
    def slotmask(q): return f"s[{80+2*q}:{81+2*q}]" if not TS else f"s[{20+0}:{21+0}]"
    e(f"s_cmp_ge_u32 s{sS}, 18\ns_cbranch_scc1 L_noffn")
    e(f"v_bfe_u32 v15, v0, 2, 2\nv_lshl_add_u32 v15, v{vG}, 3, v15\nv_lshlrev_b32 v15, 6, v15\nv_and_b32 v17, 1, v{vG}\nv_lshl_add_u32 v15, v17, 5, v15\nv_and_b32 v17, 3, v0\nv_lshl_add_u32 v15, v17, 3, v15\nv_add_u32 v17, {L_W1}, v15\nv_xor_b32 v18, 32, v17")
    thr(0, MS["W1"])
    waitflags(12)
    NB = 6
    def ffn_reads(st):
        b = 128 + 12*(st % NB)
        o = [f"ds_read_b128 {vr(b+8,4)}, v{vXB} offset:{64*st}"]
        for T in range(2):
            for hf in range(2): o.append(f"ds_read_b64_tr_b16 {vr(b+4*T+2*hf,2)}, v{17+T} offset:{st*2048+hf*256}")
        return o
    for st in range(2):
        for x in ffn_reads(st): e(x)
    for st in range(18):
        if st+2 < 18:
            for x in ffn_reads(st+2): e(x)
        e(f"s_waitcnt lgkmcnt({10 if st+2 < 18 else (5 if st == 16 else 0)})")
        b = 128 + 12*(st % NB)
        for T in range(2): mfma32(ACC+4*T, b+4*T, b+8, ACC+4*T if st else None)
    thr(0, MS["W2"])
    for r in range(4): cvtpk(32+r, ACC+2*r, ACC+2*r+1)
    for r in range(4): e(f"v_lshlrev_b32 v{ACC+2*r}, 16, v{32+r}\nv_and_b32 v{ACC+2*r+1}, s{sHI}, v{32+r}")
    e(f"s_mov_b32 s{sC0}, 0xbfb8aa3b")
    for r in range(8): e(f"v_mul_f32 v{40+r}, s{sC0}, v{ACC+r}")
    for r in range(8): e(f"v_exp_f32 v{40+r}, v{40+r}")
    for r in range(8): e(f"v_add_f32 v{40+r}, 1.0, v{40+r}")
    for r in range(8): e(f"v_rcp_f32 v{40+r}, v{40+r}")
    for r in range(8): e(f"v_mul_f32 v{ACC+r}, v{ACC+r}, v{40+r}")
    for r in range(4): cvtpk(32+r, ACC+2*r, ACC+2*r+1)
    waitflags(13)
    for tt in range(9):
        for T in range(2): e(f"ds_read_b64_tr_b16 {vr(128+4*tt+2*T,2)}, v12 offset:{tt*128+T*18432}")
    for q in range(5):
        setmask(sM0, rep16(3 << (2*q)))
        for r in range(4): e(f"v_cndmask_b32 v{40+4*q+r}, 0, v{32+r}, s[{sM0}:{sM0+1}]")
    e("s_waitcnt lgkmcnt(0)")
    for tt in range(9):
        acc = OA + 4*(tt >= 5); q = tt % 5
        mfma32(acc, 128+4*tt, 40+4*q, acc)
    e("L_noffn:")
    ts(14)
    thr(0, MS["WO"])
    waitflags(14)
    for tt in range(9): e(f"ds_read_b64_tr_b16 {vr(168+2*tt,2)}, v16 offset:{tt*128}")
    l = a.lab("L_s4")
    e(f"{l}:\nbuffer_load_dwordx4 v[32:35], v13, s[40:43], s{sT1} offen sc1")
    spin_check(15)
    e("s_waitcnt vmcnt(0)")
    check_regs([33, 35], "mark")
    e(f"s_cbranch_scc0 {l}")
    ts(15)
    for c in (QP2, "row_ror:8", "row_ror:4"):
        for r in range(4): dpp("v_add_f32", 32+r, 32+r, 32+r, c)
    cvtpk(32, 32, 33); cvtpk(33, 34, 35)
    for q in range(5):
        setmask(sM0, rep16(3 << (2*q)))
        for r in range(2): e(f"v_cndmask_b32 v{40+2*q+r}, 0, v{32+r}, s[{sM0}:{sM0+1}]")
    e("s_waitcnt lgkmcnt(0)")
    for tt in range(9):
        acc = OA + 4*(tt >= 5); q = tt % 5
        mfma16(acc, 168+2*tt, 40+2*q, acc)
    setmask(sM0, rep16(0xAAAA))
    mk = f"s[{sM0}:{sM0+1}]"
    cvtpk(32, OA, OA+1); cvtpk(33, OA+2, OA+3); cvtpk(34, OA+4, OA+5); cvtpk(35, OA+6, OA+7)
    e(f"v_cndmask_b32 v36, v34, v32, {mk}\nv_cndmask_b32 v37, v35, v33, {mk}")
    e(f"v_mov_b32_dpp v38, v36 {QP1} row_mask:0xf bank_mask:0xf\nv_mov_b32_dpp v39, v37 {QP1} row_mask:0xf bank_mask:0xf")
    e(f"v_cndmask_b32 v40, v32, v38, {mk}\nv_cndmask_b32 v41, v33, v39, {mk}\nv_cndmask_b32 v42, v38, v34, {mk}\nv_cndmask_b32 v43, v39, v35, {mk}")
    e("v_min_u32 v41, -2, v41\nv_min_u32 v43, -2, v43")
    setexec(rep16(0x1FF))
    e(f"buffer_store_dwordx4 v[40:43], v14, s[40:43], s{sT2} offen sc1")
    e("s_mov_b64 exec, -1")
    ts(16)
    if STOP <= 5: e("s_branch L_done")
    e(f"s_cmp_lg_u32 s3, 0\ns_cbranch_scc1 L_done\ns_cmp_lt_u32 s{sS}, 27\ns_cbranch_scc1 L_done")
    e(f"s_sub_u32 s{sT1}, s{sS}, 27\ns_lshl3_add_u32 s{sT1}, s{sT1}, s{sX}\ns_cmp_ge_u32 s{sT1}, 36\ns_cbranch_scc1 L_done")
    e(f"v_and_b32 v12, 1, v{vG}\nv_mul_u32_u24 v12, 0x480, v12\nv_and_b32 v13, 3, v{vN}\nv_lshl_add_u32 v12, v13, 3, v12\ns_lshl_b32 s{sT2}, s{sT1}, 5")
    e(f"buffer_load_dwordx2 v[32:33], v12, s[28:31], s{sT2} offen")
    e(f"s_lshl_b32 s{sT3}, s{sT1}, 14\ns_add_u32 s{sT3}, s{sT3}, {WS_S5}\ns_add_u32 s{sT4}, s{sT3}, 0x1000\ns_add_u32 s{sT5}, s{sT3}, 0x2000\ns_add_u32 s{sT6}, s{sT3}, 0x3000")
    for r in range(4): e(f"v_and_b32 v{MK+r}, 0x3f803f80, v{MK+r}")
    l = a.lab("L_s5")
    e(f"{l}:")
    for i in range(16): e(f"buffer_load_dwordx4 {vr(128+4*i,4)}, v{vL16}, s[40:43], s{sT3+(i>>2)} offen offset:{(i&3)*1024} sc1")
    spin_check(16)
    nopad_on()
    for i in range(16):
        e(f"s_waitcnt vmcnt({15-i})")
        mfma32(ACC, MK, 128+4*i, ACC if i else None)
        e(f"v_cmpx_ne_u32 vcc, -1, v{128+4*i+1}\nv_cmpx_ne_u32 vcc, -1, v{128+4*i+3}")
        if i < 15: e(f"s_and_b64 s[{sM0}:{sM0+1}], exec, s[{sM0}:{sM0+1}]\ns_mov_b64 exec, -1" if i else f"s_mov_b64 s[{sM0}:{sM0+1}], exec\ns_mov_b64 exec, -1")
    e(f"s_and_b64 s[{sM0}:{sM0+1}], exec, s[{sM0}:{sM0+1}]\ns_mov_b64 exec, -1\ns_cmp_eq_u64 s[{sM0}:{sM0+1}], -1")
    nopad_off()
    e(f"s_cbranch_scc0 {l}")
    ts(17)
    e(f"v_lshlrev_b32 v34, 16, v32\nv_and_b32 v35, s{sHI}, v32\nv_lshlrev_b32 v36, 16, v33\nv_and_b32 v37, s{sHI}, v33")
    for c in ("row_ror:8", "row_ror:4"):
        for r in range(4): dpp("v_add_f32", ACC+r, ACC+r, ACC+r, c)
    for r in range(4): e(f"v_add_f32 v{ACC+r}, v{ACC+r}, v{34+r}")
    cvtpk(38, ACC, ACC+1); cvtpk(39, ACC+2, ACC+3)
    setexec(0x000F000F)
    e(f"buffer_store_dwordx2 v[38:39], v12, s[44:47], s{sT2} offen")
    e(f"s_cmp_lg_u32 s{sT1}, 0\ns_cbranch_scc1 L_done")
    e("s_mov_b64 exec, 1")
    e(f"buffer_store_dword v{vTAG}, off, s[40:43], 0 sc1")
    e("s_branch L_done")

    e("L_loader:")
    e("s_setprio 2")
    VC = 16; VO = 24; VU = 34; VW1 = 36
    for q in range(8):
        f = ((q & 7) << 1) | ((q >> 2) & 1)
        e(f"v_xor_b32 v{VC+q}, {hex(16*f)}, v{vL16}" if f else f"v_mov_b32 v{VC+q}, v{vL16}")
    for i in range(4): e(f"v_mov_b32 v{12+i}, -1")
    e(f"s_lshl6_dummy" if False else f"s_lshl_b32 s96, s{sB}, 6\ns_add_u32 s96, s96, s{sSPLIT}\ns_lshl_b32 s96, s96, 17")
    e(f"s_lshl_b32 s97, s{sJ}, 19\ns_lshl_b32 s98, s{sH}, 8\ns_add_u32 s97, s97, s98")
    e(f"s_lshl3_add_u32 s98, s{sH}, s{sJ}\ns_lshl_b32 s99, s98, 14\ns_add_u32 s99, s99, {WS_S3}\ns_mul_i32 s98, s98, {16*1152}")
    e(f"s_mul_i32 s100, s{sX}, 18\ns_add_u32 s100, s100, s{sS}\ns_mul_i32 s101, s100, {32*1152}\ns_lshl_b32 s100, s100, 6")
    e("s_waitcnt lgkmcnt(0)")
    ts(1)
    srd(28, 6, 131072, add=96)
    srd(40, 26, WS_SIZE)
    e("s_barrier")
    ops = []
    gorder = [0, 32, 64, 96, 16, 48, 80, 112]
    def op(txt, ms=None): ops.append([txt, ms])
    sCL = 96
    for gi in range(9):
        if gi == cfg["clean_after"] or (gi == 8 and cfg["clean_after"] >= 8):
            for i in range(16):
                pre = f"s_add_u32 s99, s99, 0x1000\n" if (i and i % 4 == 0) else ""
                op(pre + f"buffer_store_dwordx4 v[12:15], v{vL16}, s[40:43], s99 offen offset:{(i&3)*1024} sc1")
            op(f"s_mul_i32 s99, s2, 2304\ns_add_u32 s99, s99, {WS_S5}\nbuffer_store_dwordx4 v[12:15], v{vL16}, s[40:43], s99 offen sc1")
            op(f"buffer_store_dwordx4 v[12:15], v{vL16}, s[40:43], s99 offen offset:1024 sc1")
            op(f"s_mov_b64 exec, 0xffff\nbuffer_store_dwordx4 v[12:15], v{vL16}, s[40:43], s99 offen offset:2048 sc1\ns_mov_b64 exec, -1", MS["CLEAN"])
        if gi < 8:
            for i in range(16):
                row = gorder[gi] + i
                pre = f"s_mov_b32 m0, {hex(row*1024)}\n" if i % 4 == 0 else ""
                op(pre + f"buffer_load_dwordx4 v{VC+(row&7)}, s[28:31], m0 offen offset:{(i&3)*1024} lds", MS[f"G{gi}"] if i == 15 else None)
    issued = [0]; done = [0]
    def signal(ms): e(f"v_mov_b32 v{vFV}, {ms}\nds_write_b32 v{vFW}, v{vFV}")
    def run(ops, drain=True, extra=None):
        for o in ops:
            inflight.append(o)
            if len(inflight) > W:
                e(f"s_waitcnt vmcnt({W-1})")
                d = inflight.pop(0)
                if d[1]: signal(d[1])
            e(o[0])
            if extra: extra.pop(0)() if extra else None
        if drain:
            while inflight:
                idx = next((i for i, o in enumerate(inflight) if o[1]), None)
                if idx is None: break
                e(f"s_waitcnt vmcnt({len(inflight)-idx-1})"); signal(inflight[idx][1])
                del inflight[:idx+1]
    inflight = []
    first = ops[:W]; rest = ops[W:]
    run(first, drain=False)
    srd(32, 12, 4194304 - 0, add=None); e("s_add_u32 s32, s32, s97\ns_addc_u32 s33, s33, 0\ns_sub_u32 s34, s34, s97")
    srd(36, 14, 18432, add=98)
    srd(44, 18, 5308416); e("s_add_u32 s44, s44, s100\ns_addc_u32 s45, s45, 0\ns_sub_u32 s46, s46, s100")
    srd(48, 20, 36864, add=101)
    e(f"v_lshlrev_b32 v4, 1, v{vG}" if False else f"v_lshlrev_b32 v{VU}, 1, v{vG}\nv_xor_b32 v{VU}, v{VU}, v{vN}\nv_lshlrev_b32 v{VU}, 4, v{VU}\nv_lshl_add_u32 v{VU}, v{vG}, 13, v{VU}\nv_xor_b32 v{VU+1}, 0x80, v{VU}")
    e(f"v_lshrrev_b32 v37, 2, v0\nv_mul_u32_u24 v{VW1}, 0x2400, v37\nv_lshrrev_b32 v37, 4, v0\nv_and_b32 v37, 2, v37\nv_and_b32 v38, 3, v0\nv_xor_b32 v37, v37, v38\nv_lshl_add_u32 v{VW1}, v37, 4, v{VW1}")
    for i in range(9):
        e(f"v_add_u32 v37, {hex(64*i)}, v0\nv_mul_u32_u24 v38, 0x38f, v37\nv_lshrrev_b32 v38, 16, v38\nv_mul_u32_u24 v39, 0x48, v38\nv_sub_u32 v40, v37, v39\nv_and_b32 v38, 6, v38\nv_xor_b32 v40, v40, v38\nv_add_u32 v40, v40, v39\nv_subrev_u32 v40, {hex(64*i)}, v40\nv_lshlrev_b32 v{VO+i}, 4, v40")
    run(rest, drain=True)
    ts(2)
    if STOP <= 3: e("s_branch L_done")
    thr(4, 0)
    waitflags(20)
    ts(3)
    ops = []
    for it in range(16):
        pre = f"s_mov_b32 m0, {hex(L_WUV)}\ns_mov_b32 s96, 0\ns_mov_b32 s97, 0x8000\n" if it == 0 else "s_addk_i32 m0, 0x400\ns_add_u32 s96, s96, s97\n"
        op(pre + f"buffer_load_dwordx4 v{VU+((it>>1)&1)}, s[32:35], s96 offen lds", MS["WUV"] if it == 15 else None)
    run(ops, drain=False)
    e(f"s_cmp_ge_u32 s{sS}, 18\ns_cbranch_scc1 L_ld_noffn")
    saved = [list(o) for o in inflight]
    ops = []
    for it in range(36):
        pre = f"s_mov_b32 m0, {hex(L_W1)}\ns_mov_b32 s96, 0\ns_mov_b32 s97, {16*9216}\n" if it == 0 else "s_addk_i32 m0, 0x400\ns_add_u32 s96, s96, s97\n"
        op(pre + f"buffer_load_dwordx4 v{VW1}, s[44:47], s96 offen lds", MS["W1"] if it == 35 else None)
    def lin(srdn, lbase, n, ms):
        for it in range(n):
            pre = ""
            if it % 4 == 0: pre = f"s_mov_b32 m0, {hex(lbase+it*1024)}\ns_movk_i32 s96, {hex(it*1024)}\n" if it*1024 < 32768 else f"s_mov_b32 m0, {hex(lbase+it*1024)}\ns_mov_b32 s96, {hex(it*1024)}\n"
            op(pre + f"buffer_load_dwordx4 v{VO+it%9}, s[{srdn}:{srdn+3}], s96 offen offset:{(it&3)*1024} lds", ms if it == n-1 else None)
    lin(48, L_W2, 36, MS["W2"])
    lin(36, L_WO, 18, MS["WO"])
    run(ops, drain=True)
    e("s_branch L_ld_done")
    e("L_ld_noffn:")
    inflight = saved
    ops = []
    lin(36, L_WO, 18, MS["WO"])
    run(ops, drain=True)
    e("L_ld_done:")
    ts(4)
    e("L_done:")
    if cfg.get("amp"):
        wg, wv, i0, i1, K = cfg["amp"]
        e(f"s_cmp_lg_u32 s2, {wg}\ns_cbranch_scc1 L_amp_no\ns_cmp_lg_u32 s3, {wv}\ns_cbranch_scc1 L_amp_no")
        e(f"s_waitcnt lgkmcnt(0)\ns_memrealtime s[6:7]\ns_waitcnt lgkmcnt(0)")
        if i1 == 18: e(f"s_sub_u32 s4, s6, s{64+2*i0}")
        else: e(f"s_sub_u32 s4, s{64+2*i1}, s{64+2*i0}")
        e(f"s_mul_i32 s4, s4, {K}\ns_min_u32 s4, s4, 100000\nL_amp:\ns_memrealtime s[8:9]\ns_waitcnt lgkmcnt(0)\ns_sub_u32 s5, s8, s6\ns_cmp_lt_u32 s5, s4\ns_cbranch_scc1 L_amp\nL_amp_no:")
    if TS == 1:
        e("s_mov_b64 exec, -1\ns_waitcnt lgkmcnt(0)")
        e(f"s_mul_i32 s4, s2, 5\ns_add_u32 s4, s4, s3\ns_lshl_b32 s4, s4, 7\ns_add_u32 s4, s4, {WS_TS}\ns_memrealtime s[6:7]\nv_lshlrev_b32 v1, 2, v0\nv_mov_b32 v2, 0")
        for i in range(18): e(f"v_writelane_b32 v2, s{64+2*i}, {i}")
        e("s_waitcnt lgkmcnt(0)\nv_writelane_b32 v2, s6, 18")
        e(f"s_mov_b64 exec, 0xffffffff\nbuffer_store_dword v2, v1, s[40:43], s4 offen")
    e("L_end:\ns_endpgm")
    for c in sorted(set(fails)):
        e(f"L_fail{c}:\ns_movk_i32 s4, {c}\ns_branch L_fail")
    if fails:
        e("L_fail:\ns_mov_b64 exec, 1\ns_mov_b32 s28, s24\ns_mov_b32 s29, s25\ns_mov_b32 s30, 256\ns_mov_b32 s31, 0x20000\ns_lshl_b32 s5, s4, 2\nv_mov_b32 v1, 1\nv_mov_b32 v2, s5\nbuffer_atomic_add v1, v2, s[28:31], 0 offen\ns_endpgm")

    lines = a.L
    head = '.amdgcn_target "amdgcn-amd-amdhsa--gfx950"\n.text\n'
    lines = finish(lines, cfg, head)
    hdr = open("cdna_kernels/" + NAME + ".s.ref").read().split("; @launch")[0]
    out = hdr + f"; @launch grid=(256,1,1) block=(320,1,1) lds={LDS_BYTES}\n" + head
    out += f".globl {NAME}_kernel\n.p2align 12\n.type {NAME}_kernel,@function\n{NAME}_kernel:\n" + "\n".join(lines) + "\n"
    out += f""".section .rodata,"a"
.p2align 6
.amdhsa_kernel {NAME}_kernel
  .amdhsa_next_free_vgpr 256
  .amdhsa_next_free_sgpr 102
  .amdhsa_accum_offset 256
  .amdhsa_group_segment_fixed_size 0
  .amdhsa_kernarg_size 96
  .amdhsa_user_sgpr_count 2
  .amdhsa_user_sgpr_kernarg_segment_ptr 1
  .amdhsa_system_sgpr_workgroup_id_x 1
.end_amdhsa_kernel
"""
    return out

def finish(lines, cfg, head):
    walk_at = lines.index("; WALK")
    body = [l for l in lines]
    body = pad_hazards(body)
    if not cfg["pads"]:
        return [l for l in body if not l.startswith(";")]
    def build(npads):
        tree = []
        def rec(lo, hi):
            if hi - lo == 1: tree.append(f"s_branch L_pad{lo}"); return
            mid = (lo + hi) // 2
            tree.append(f"s_cmp_lt_u32 s99, {mid}"); tree.append(f"s_cbranch_scc0 L_wt{mid}")
            rec(lo, mid); tree.append(f"L_wt{mid}:"); rec(mid, hi)
        pre = ["s_and_b32 s99, s53, 15", "s_lshl2_add_u32 s99, s99, s3", f"s_cmp_ge_u32 s99, {npads}", "s_cbranch_scc1 L_back", "s_mov_b64 exec, 0"]
        rec(0, npads)
        return ["; NOPAD_ON"] + pre + tree + ["L_back:", "s_mov_b64 exec, -1", "; NOPAD_OFF"]
    npads = 32
    for _ in range(6):
        i = body.index("; WALK")
        cur = body[:i] + build(npads) + body[i+1:]
        sz = sizes_of([l if not l.startswith(".") else "" for l in cur] + [f"L_pad{k}:" for k in range(npads)], head + "kstart:\n", "")[:len(cur)]
        out = []; off = 0; nxt = None; k = 0; nop = False; after_walk = False
        step = cfg["padstep"]
        for l, s in zip(cur, sz):
            if l == "; NOPAD_ON": nop = True
            if l == "; NOPAD_OFF": nop = False
            if l == "L_back:": after_walk = True; nxt = (off // step + 1) * step
            if after_walk and s and off >= nxt and not nop:
                out.append(f"L_pad{k}:"); out.append("s_cbranch_execz L_back"); off += 4; k += 1
                nxt = (off // step + 1) * step
            out.append(l); off += s
        if k == npads: break
        npads = k
    assert k == npads and npads <= 64, (k, npads)
    cfg["_size"] = off; cfg["_npads"] = npads
    sys.stderr.write(f"code bytes {off}, pads {npads}\n")
    return [l for l in out if not l.startswith(";")]

if __name__ == "__main__":
    import chk, json
    kw = json.loads(sys.argv[2]) if len(sys.argv) > 2 else {}
    s = gen(**kw)
    open(sys.argv[1], "w").write(s)
    print(chk.check(s))
```

```python
import sys, struct
sys.path.insert(0, "work")
from asmlib import *
NAME = "parallel_sum__compressed_kv_cla__dense_activation_silu__decode"
def f2h(x): return hex(struct.unpack("<I", struct.pack("<f", x))[0])
def ar(a, n=1): return f"a{a}" if n == 1 else f"a[{a}:{a+n-1}]"

WS_EPOCH = 0; WS_ID = 0x1000; WS_GO = 0x8000; WS_S1 = 0x40000; S1_ALT = 0x20000; WS_S2 = 0x80000; WS_MA = 0xC0000
WS_S3B = 0x100000; WS_S5 = 0x200000; WS_S3A = 0x400000; WS_TS = 0x900000; WS_SIZE = 0xA00000
RSZ = 39296; O_W1 = 0; O_W2 = 11520; O_UV = 21888; O_WO = 30080; O_WQ = O_WO
L_XN = 157184; L_HB = 159488; L_VB = 161024
L_QA = 131072; L_PB = 131072; L_MX = 131072 + 8192; L_FB = 131072 + 12288
LDS_BYTES = 163840

DEF = dict(ts=0, stop=99, pads=1, padstep=512, dbg=0, nalt=12, cs=33280, aw0=32, qa_at=4, go=0, go_at=16, vearly=1, wb=1, order="1,2,uv,o", hw=63, hbar=3, wukat=0)

def gen(**kw):
    cfg = dict(DEF); cfg.update(kw)
    TS = cfg["ts"]; STOP = cfg["stop"]; CS = cfg["cs"]
    a = Asm()
    cur = [a]
    def e(s): cur[0](s)
    sX, sI, sH, sKQ, sTAG, sSPIN, sT0, sT1, sT2, sT3, sT4, sT5, sT6, sT7, sT8, sT9 = range(52, 68)
    sSP, sB = sH, sKQ
    sM0, sM1 = 48, 50
    sHI, sC0, sC1 = 100, 101, 22
    sWV = 3
    WS = 40
    def ts(i):
        if TS: e(f"s_memrealtime s[{68+2*i}:{69+2*i}]")
    def srd(d, p, size, add=None):
        if add is None: e(f"s_mov_b32 s{d}, s{p}\ns_mov_b32 s{d+1}, s{p+1}")
        else: e(f"s_add_u32 s{d}, s{p}, s{add}\ns_addc_u32 s{d+1}, s{p+1}, 0")
        e(f"s_mov_b32 s{d+2}, {hex(size)}\ns_mov_b32 s{d+3}, 0x20000")
    def setexec(m):
        lo = m & 0xffffffff; hi = m >> 32
        if m == (1 << 64) - 1: e("s_mov_b64 exec, -1")
        elif hi == 0: e(f"s_mov_b64 exec, {hex(lo)}" if lo < 0x80000000 else f"s_mov_b32 exec_lo, {hex(lo)}\ns_mov_b32 exec_hi, 0")
        elif hi == lo: e(f"s_mov_b32 exec_lo, {hex(lo)}\ns_mov_b32 exec_hi, exec_lo")
        else: e(f"s_mov_b32 exec_lo, {hex(lo)}\ns_mov_b32 exec_hi, {hex(hi)}")
    def setmask(s, m):
        lo = m & 0xffffffff; hi = m >> 32
        e(f"s_mov_b32 s{s}, {hex(lo)}")
        e(f"s_mov_b32 s{s+1}, s{s}" if hi == lo else f"s_mov_b32 s{s+1}, {hex(hi)}")
    rep16 = lambda m: m * 0x0001000100010001
    fails = []
    nopad_on = lambda: e("; NOPAD_ON")
    nopad_off = lambda: e("; NOPAD_OFF")
    def masked(m, txt):
        nopad_on(); setexec(m); e(txt); e("s_mov_b64 exec, -1"); nopad_off()
    v0, vG, vN, vL16, vTAG = 0, 1, 2, 3, 4
    def dpp(op, d, s0, s1, ctl, bank="0xf"): e(f"{op}_dpp v{d}, v{s0}, v{s1} {ctl} row_mask:0xf bank_mask:{bank}")
    def movdpp(d, s, ctl, bank="0xf"): e(f"v_mov_b32_dpp v{d}, v{s} {ctl} row_mask:0xf bank_mask:{bank}")
    QP1 = "quad_perm:[1,0,3,2]"; QP2 = "quad_perm:[2,3,0,1]"
    def R(x, n): return x if isinstance(x, str) else vr(x, n)
    def mfma32(d, A, B, C=None): e(f"v_mfma_f32_16x16x32_bf16 {vr(d,4)}, {R(A,4)}, {R(B,4)}, {vr(C,4) if C is not None else 0}")
    def mfma16(d, A, B, C=None): e(f"v_mfma_f32_16x16x16_bf16 {vr(d,4)}, {R(A,2)}, {R(B,2)}, {vr(C,4) if C is not None else 0}")
    def cvtpk(d, x, y): e(f"v_cvt_pk_bf16_f32 v{d}, v{x}, v{y}")
    def swap16(v, t, op): e(f"v_mov_b32 v{t}, v{v}\nv_permlane16_swap_b32 v{t}, v{v}\n{op} v{v}, v{v}, v{t}")
    def swap32(v, t, op): e(f"v_mov_b32 v{t}, v{v}\nv_permlane32_swap_b32 v{t}, v{v}\n{op} v{v}, v{v}, v{t}")
    def mktag():
        e(f"s_mul_i32 s{sTAG}, s{sTAG}, 1664525\ns_add_u32 s{sTAG}, s{sTAG}, 0x3c6ef35f\nv_mov_b32 v{vTAG}, s{sTAG}")

    cold = [None]
    MASKS = [4, 6, 8, 10, 12, 14, 16, 18, 20]
    def gather(items, code, post=None, extra=0, alt=None):
        lc = a.lab("L_gc"); lr = a.lab("L_gr"); n = len(items)
        e(f"{lc}:")
        for i, (ld, r) in enumerate(items):
            m = MASKS[i]
            e(f"s_waitcnt vmcnt({n-1-i+extra})")
            e(f"v_cmp_ne_u32 s[{m}:{m+1}], s{sTAG}, v{r}")
            if post: post(i)
            if i == 1: e(f"s_or_b64 s[{sM1}:{sM1+1}], s[{MASKS[0]}:{MASKS[0]+1}], s[{m}:{m+1}]")
            elif i > 1: e(f"s_or_b64 s[{sM1}:{sM1+1}], s[{sM1}:{sM1+1}], s[{m}:{m+1}]")
        al = sM1 if n > 1 else MASKS[0]
        e(f"s_cmp_lg_u64 s[{al}:{al+1}], 0\ns_cbranch_scc1 {lr}")
        c = cold[0]
        c(f"{lr}:")
        if cfg["dbg"]:
            l = f"L_fail{code}"; fails.append(code)
        else: l = "L_end"
        c(f"s_sub_u32 s{sSPIN}, s{sSPIN}, 1\ns_cbranch_scc1 {l}")
        if alt:
            regs_, bit = alt
            c(f"s_add_u32 s{sC1}, s{sC1}, 1\ns_cmp_gt_u32 s{sC1}, {cfg['nalt']}\ns_cselect_b32 s{sC0}, {hex(bit)}, 0")
            for r in regs_: c(f"s_xor_b32 s{r}, s{r}, s{sC0}")
        c("; NOPAD_ON")
        for i, (ld, r) in enumerate(items):
            m = MASKS[i]; ls = a.lab("L_gs")
            if n > 1: c(f"s_mov_b64 exec, s[{m}:{m+1}]\ns_cbranch_execz {ls}")
            else: c(f"s_mov_b64 exec, s[{m}:{m+1}]")
            c(ld("sc1"))
            if n > 1: c(f"{ls}:")
        c("s_mov_b64 exec, -1")
        c("; NOPAD_OFF")
        c(f"s_waitcnt vmcnt(0)\ns_branch {lc}")
    def lane_tr(vr_, vcq):
        e(f"v_bfe_u32 v{vr_}, v0, 2, 2\nv_and_b32 v{vcq}, 3, v0")

    ts(0)
    e("s_cmp_ge_u32 s2, 256\ns_cbranch_scc1 L_end")
    e("s_load_dwordx16 s[4:19], s[0:1], 0\ns_load_dwordx8 s[20:27], s[0:1], 64")
    e(f"v_lshrrev_b32 v1, 6, v0\nv_and_b32 v0, 63, v0\nv_readfirstlane_b32 s3, v1")
    e(f"s_and_b32 s{sX}, s2, 7\ns_bfe_u32 s{sI}, s2, 0x40003\ns_mov_b32 s{sSPIN}, 0x40000\ns_mov_b32 s{sHI}, 0xffff0000")
    e(f"v_lshlrev_b32 v{vL16}, 4, v0\nv_lshrrev_b32 v{vG}, 4, v0\nv_and_b32 v{vN}, 15, v0")
    e("s_cmp_ge_u32 s2, 128\ns_cbranch_scc1 L_attn")

    cold[0] = Asm()
    sFS = sT9; sR = sT8
    e(f"s_lshr_b32 s{sH}, s{sI}, 2\ns_lshl2_add_u32 s{sH}, s{sX}, s{sH}\ns_and_b32 s{sKQ}, s{sI}, 3\ns_lshl4_add_u32 s{sFS}, s{sX}, s{sI}\ns_mul_i32 s{sR}, s3, {RSZ}")
    vXO, vW64, vWK = 5, 6, 7
    e(f"v_lshrrev_b32 v12, 5, v0\nv_and_b32 v13, 31, v0\nv_mul_u32_u24 v12, 0x480, v12\nv_mad_u32_u24 v{vXO}, v13, 36, v12")
    e(f"v_lshrrev_b32 v12, 2, v0\nv_lshlrev_b32 v{vW64}, 13, v12\nv_lshrrev_b32 v12, 4, v0\nv_and_b32 v12, 2, v12\nv_and_b32 v13, 3, v0\nv_xor_b32 v12, v12, v13\nv_lshl_add_u32 v{vW64}, v12, 4, v{vW64}")
    e(f"v_lshlrev_b32 v{vWK}, 13, v{vN}\nv_lshl_add_u32 v{vWK}, v{vG}, 4, v{vWK}")
    e(f"s_mul_i32 s{sT0}, s{sKQ}, {144*8192}\ns_lshl_b32 s{sT1}, s{sH}, 8\ns_add_u32 s{sT0}, s{sT0}, s{sT1}\ns_lshl_b32 s{sT2}, s3, 6\ns_add_u32 s{sT0}, s{sT0}, s{sT2}")
    e(f"s_lshl2_add_u32 s{sT2}, s{sKQ}, s3\ns_lshl_b32 s{sT2}, s{sT2}, 18\ns_add_u32 s{sT6}, s{sT1}, s{sT2}\ns_add_u32 s{sT7}, s{sT6}, {16*8192}")
    e(f"s_add_u32 s{sT3}, s{sR}, {O_WQ}")
    e("s_waitcnt lgkmcnt(0)")
    ts(1)
    e(f"s_load_dword s{sTAG}, s[26:27], 0")
    srd(28, 4, 2304)
    XR = 32
    e(f"buffer_load_dwordx4 {vr(XR,4)}, v{vXO}, s[28:31], 0 offen\nbuffer_load_dwordx4 {vr(XR+4,4)}, v{vXO}, s[28:31], 0 offen offset:16\nbuffer_load_dword v{XR+8}, v{vXO}, s[28:31], 0 offen offset:32")
    srd(32, 8, 4718592); srd(36, 10, 4194304)
    if cfg["hbar"] & 1: e("s_barrier")
    for it in range(9):
        e(f"s_mov_b32 m0, s{sT3}" if it == 0 else f"s_add_u32 m0, m0, 0x400\ns_add_u32 s{sT0}, s{sT0}, {16*8192}")
        e(f"buffer_load_dwordx4 v{vW64}, s[32:35], s{sT0} offen lds")
    WUKR = 224
    def wuk():
        for T in range(2):
            for t in range(4): e(f"buffer_load_dwordx4 {vr(WUKR+16*T+4*t,4)}, v{vWK}, s[36:39], s{sT6+T} offen offset:{64*t}")
    if cfg["hbar"] & 2: e("s_barrier")
    if cfg["wukat"] == 0: wuk()
    srd(WS, 26, WS_SIZE)
    srd(28, 18, 5308416); srd(32, 20, 5308416); srd(44, 14, 4718592)
    e(f"s_mov_b32 s98, s12\ns_mov_b32 s99, s13")
    e("; WALK h")
    vTA0, vTA1, vTB0, vTB1, vXB = 8, 9, 10, 11, 12
    lane_tr(13, 14)
    e(f"v_lshlrev_b32 v14, 3, v14\nv_lshl_add_u32 v13, v13, 6, v14\nv_add_u32 v13, s{sR}, v13")
    e(f"v_lshl_add_u32 v{vTA0}, v{vG}, 9, v13\nv_and_b32 v14, 1, v{vG}\nv_lshl_add_u32 v{vTA0}, v14, 5, v{vTA0}\nv_xor_b32 v{vTA1}, 32, v{vTA0}")
    e(f"v_lshl_add_u32 v{vTB0}, v{vG}, 8, v13\nv_lshrrev_b32 v14, 1, v{vG}\nv_lshl_add_u32 v{vTB0}, v14, 5, v{vTB0}\nv_xor_b32 v{vTB1}, 32, v{vTB0}")
    e(f"v_and_b32 v14, 1, v{vN}\nv_mul_u32_u24 v14, 0x480, v14\nv_add_u32 v14, {L_XN}, v14\nv_lshl_add_u32 v{vXB}, v{vG}, 4, v14\nv_lshl_add_u32 v15, v{vG}, 3, v14")
    e(f"s_mul_i32 s{sT0}, s{sKQ}, 288\nv_add_u32 v13, s{sT0}, v{vXB}\nv_add_u32 v14, s{sT0}, v15")
    e(f"s_mul_i32 s{sT0}, s3, 288\nv_add_u32 v{vXB}, s{sT0}, v{vXB}\nv_add_u32 v15, s{sT0}, v15")
    e(f"v_add_u32 v{vXO}, {L_XN}, v{vXO}")
    VW1 = 16; VW2 = 21
    XF = 42
    e(f"s_waitcnt vmcnt({17 if cfg['wukat'] == 0 else 9})")
    ts(2)
    if cfg["wukat"] == 1: wuk()
    for k in range(9): e(f"v_lshlrev_b32 v{XF+2*k}, 16, v{XR+k}\nv_and_b32 v{XF+2*k+1}, s{sHI}, v{XR+k}")
    e(f"v_pk_add_f32 v[60:61], {vr(XF,2)}, {vr(XF+2,2)}")
    for k in range(2, 9): e(f"v_pk_add_f32 v[60:61], v[60:61], {vr(XF+2*k,2)}")
    e("v_add_f32 v60, v60, v61")
    def reduce32(v, t):
        for c in (QP1, QP2, "row_half_mirror", "row_mirror"): dpp("v_add_f32", v, v, v, c)
        swap16(v, t, "v_add_f32")
    def bfr(v): e(f"v_cvt_pk_bf16_f32 v{v}, v{v}, v{v}\nv_and_b32 v{v}, s{sHI}, v{v}")
    reduce32(60, 61)
    e(f"v_mul_f32 v60, {f2h(1/576)}, v60")
    for k in range(9):
        e(f"v_pk_add_f32 v[30:31], {vr(XF+2*k,2)}, v[60:61] op_sel_hi:[1,0] neg_lo:[0,1] neg_hi:[0,1]")
        e("v_pk_mul_f32 v[62:63], v[30:31], v[30:31]" if k == 0 else "v_pk_fma_f32 v[62:63], v[30:31], v[30:31], v[62:63]")
    e("v_add_f32 v62, v62, v63")
    reduce32(62, 63)
    e(f"v_mul_f32 v62, {f2h(1/576)}, v62"); bfr(62)
    e("v_add_f32 v62, 0x3727c5ac, v62"); bfr(62)
    e("v_sqrt_f32 v62, v62"); bfr(60); bfr(62)
    e("v_rcp_f32 v62, v62")
    for k in range(9):
        e(f"v_pk_add_f32 {vr(XF+2*k,2)}, {vr(XF+2*k,2)}, v[60:61] op_sel_hi:[1,0] neg_lo:[0,1] neg_hi:[0,1]")
        cvtpk(XR+k, XF+2*k, XF+2*k+1)
    for k in range(9): e(f"v_lshlrev_b32 v{XF+2*k}, 16, v{XR+k}\nv_and_b32 v{XF+2*k+1}, s{sHI}, v{XR+k}")
    for k in range(9):
        e(f"v_pk_mul_f32 {vr(XF+2*k,2)}, {vr(XF+2*k,2)}, v[62:63] op_sel_hi:[1,0]")
        cvtpk(XR+k, XF+2*k, XF+2*k+1)
        if k & 1: e(f"ds_write2_b32 v{vXO}, v{XR+k-1}, v{XR+k} offset0:{k-1} offset1:{k}")
    e(f"ds_write_b32 v{vXO}, v{XR+8} offset:32")
    XB = 128
    for st in range(4): e(f"ds_read_b128 {vr(XB+4*st,4)}, v13 offset:{64*st}")
    e(f"ds_read_b64 {vr(XB+16,2)}, v14 offset:256")
    e(f"v_and_b32 v30, 1, v{vN}\nv_lshlrev_b32 v13, 7, v30\nv_bfe_u32 v30, v{vN}, 1, 1\nv_lshl_add_u32 v30, v30, 2, v{vG}\nv_lshl_add_u32 v13, v30, 4, v13")
    e(f"s_lshl_b32 s{sT1}, s{sH}, 12\ns_add_u32 s{sT1}, s{sT1}, {WS_S1}\ns_lshl2_add_u32 s{sT0}, s3, s{sKQ}\ns_lshl_b32 s{sT0}, s{sT0}, 8\ns_add_u32 s{sT0}, s{sT0}, s{sT1}")
    e(f"v_and_b32 v30, 3, v{vN}\nv_lshlrev_b32 v14, 8, v30\nv_bfe_u32 v30, v{vN}, 2, 1\nv_lshl_add_u32 v14, v30, 7, v14\nv_lshl_add_u32 v14, v{vG}, 5, v14\nv_lshrrev_b32 v30, 3, v{vN}\nv_lshl_add_u32 v14, v30, 4, v14")
    setmask(sM0, rep16(0xCCCC))
    e(f"s_waitcnt vmcnt({8 if cfg['wukat'] < 2 else 0})")
    ts(3)
    if cfg["wukat"] == 2: wuk()
    QA_ = 148; ACC = 48
    for st in range(4):
        for T in range(2):
            for hf in range(2): e(f"ds_read_b64_tr_b16 {vr(QA_+8*st+4*T+2*hf,2)}, v{vTA0+T} offset:{O_WQ+st*2048+hf*256}")
    for T in range(2): e(f"ds_read_b64_tr_b16 {vr(QA_+32+2*T,2)}, v{vTB0+T} offset:{O_WQ+8192}")
    for st in range(4):
        e(f"s_waitcnt lgkmcnt({14-4*st})")
        for T in range(2): mfma32(ACC+4*T, QA_+8*st+4*T, XB+4*st, ACC+4*T if st else None)
    e("s_waitcnt lgkmcnt(0)")
    for T in range(2): mfma16(ACC+4*T, QA_+32+2*T, XB+16, ACC+4*T)
    mktag()
    e(f"v_mov_b32 v58, v{vTAG}\nv_mov_b32 v59, v{vTAG}")
    cvtpk(30, ACC, ACC+1); cvtpk(31, ACC+2, ACC+3); cvtpk(56, ACC+4, ACC+5); cvtpk(57, ACC+6, ACC+7)
    e(f"v_cndmask_b32 v56, v30, v56, s[{sM0}:{sM0+1}]\nv_cndmask_b32 v57, v31, v57, s[{sM0}:{sM0+1}]")
    masked(rep16(0xF), f"buffer_store_dwordx4 v[56:59], v13, s[40:43], s{sT0} offen\ns_xor_b32 s{sT0}, s{sT0}, {hex(S1_ALT)}\nbuffer_store_dwordx4 v[56:59], v13, s[40:43], s{sT0} offen sc1")
    ts(4)
    if STOP <= 1: e("s_branch L_done")
    G = 32
    it1 = [((lambda fl, t=t: f"buffer_load_dwordx4 {vr(G+4*t,4)}, v14, s[40:43], s{sT1} offen offset:{1024*t} {fl}"), G+4*t+2) for t in range(4)]
    for x in it1: e(x[0]("sc1"))
    e(f"v_bfe_u32 v30, v{vN}, 2, 1\nv_lshlrev_b32 v13, 16, v30\nv_and_b32 v30, 1, v{vN}\nv_lshl_add_u32 v30, v30, 2, v{vG}\nv_lshl_add_u32 v13, v30, 4, v13")
    e(f"s_lshl_b32 s{sT0}, s{sH}, 11\ns_lshl2_add_u32 s{sT2}, s{sKQ}, s3\ns_lshl_b32 s{sT2}, s{sT2}, 7\ns_add_u32 s{sT0}, s{sT0}, s{sT2}\ns_add_u32 s{sT0}, s{sT0}, {WS_S2}")
    for j in range(5):
        e(f"v_add_u32 v30, {64*j}, v0\nv_mul_u32_u24 v31, 0xcccd, v30\nv_lshrrev_b32 v31, 18, v31\nv_mul_u32_u24 v{VW1+j}, 5, v31\nv_sub_u32 v30, v30, v{VW1+j}\nv_mul_u32_u24 v31, 0x2400, v31\nv_lshl_add_u32 v{VW1+j}, v30, 4, v31")
    for j in range(9):
        e(f"v_add_u32 v30, {hex(64*j)}, v0\nv_mul_u32_u24 v31, 0xe39, v30\nv_lshrrev_b32 v31, 16, v31\nv_mul_u32_u24 v{VW2+j}, 18, v31\nv_sub_u32 v30, v30, v{VW2+j}\nv_mul_u32_u24 v31, 0x480, v31\nv_lshl_add_u32 v{VW2+j}, v30, 4, v31")
    setmask(sM0, rep16(0xAAAA))
    e(f"s_mov_b32 s{sC1}, 0\ns_mov_b32 s{sT2}, {f2h(128**-0.5*1.4426950408889634)}")
    gather(it1, 1, alt=([sT1], S1_ALT))
    ts(5)
    def merge_u(G):
        for t in range(4):
            movdpp(G+4*t+2, G+4*t, "row_ror:8"); movdpp(G+4*t+3, G+4*t+1, "row_ror:8")
    merge_u(G)
    for t in range(4):
        for T in range(2): mfma32(ACC+4*T, WUKR+16*T+4*t, G+4*t, ACC+4*T if t else None)
    def quadsel(D, pre=None):
        mk = f"s[{sM0}:{sM0+1}]"
        if pre: pre()
        for r in range(4): e(f"v_cndmask_b32 v{D+r}, v{ACC+r}, v{ACC+4+r}, {mk}\nv_cndmask_b32 v{ACC+r}, v{ACC+4+r}, v{ACC+r}, {mk}")
        for r in range(4): dpp("v_add_f32", D+r, ACC+r, D+r, QP1)
        for r in range(4): dpp("v_add_f32", D+r, D+r, D+r, QP2)
    quadsel(60)
    for r in range(4): e(f"v_mul_f32 v{60+r}, s{sT2}, v{60+r}")
    cvtpk(56, 60, 61); cvtpk(57, 62, 63)
    masked(rep16(0x33), f"buffer_store_dwordx4 v[56:59], v13, s[40:43], s{sT0} offen sc1")
    ts(6)
    if STOP <= 2: e("s_branch L_done")
    if cfg["go"]:
        e(f"s_lshl_b32 s{sT0}, s{sFS}, 7\ns_add_u32 s{sT0}, s{sT0}, {WS_GO}")
        itg = [((lambda fl: f"buffer_load_dwordx4 v[32:35], off, s[40:43], s{sT0} {fl}"), 34)]
        e(itg[0][0]("sc1")); gather(itg, 2)
    ts(7)
    srd(36, 98, 4194304)
    ops = {}
    o = []
    for it in range(12):
        pre = f"s_add_u32 m0, s{sR}, {O_W1}\ns_mul_i32 s{sT0}, s3, {144*9216}\ns_mul_i32 s{sT1}, s{sFS}, 72\ns_andn2_b32 s{sT1}, s{sT1}, 15\ns_add_u32 s{sT0}, s{sT0}, s{sT1}\n" if it == 0 else "s_add_u32 m0, m0, 0x400\n"
        if it in (5, 10): pre += f"s_add_u32 s{sT0}, s{sT0}, {64*9216}\n"
        ld = f"buffer_load_dwordx4 v{VW1+it%5}, s[28:31], s{sT0} offen lds"
        if it == 11: ld = "; NOPAD_ON\ns_mov_b64 exec, 0xffff\n" + ld + "\ns_mov_b64 exec, -1\n; NOPAD_OFF"
        o.append(pre + ld)
    ops["1"] = o; o = []
    for it in range(11):
        pre = f"s_add_u32 m0, s{sR}, {O_W2}\ns_mul_i32 s{sT0}, s{sFS}, {36*1152}\ns_mul_i32 s{sT1}, s3, 288\ns_add_u32 s{sT0}, s{sT0}, s{sT1}\n" if it == 0 else "s_add_u32 m0, m0, 0x400\n"
        if it == 9: pre += f"s_add_u32 s{sT0}, s{sT0}, {32*1152}\n"
        ld = f"buffer_load_dwordx4 v{VW2+it%9}, s[32:35], s{sT0} offen lds"
        if it == 10: ld = "; NOPAD_ON\ns_mov_b64 exec, 0xff\n" + ld + "\ns_mov_b64 exec, -1\n; NOPAD_OFF"
        o.append(pre + ld)
    ops["2"] = o; o = []
    for it in range(8):
        pre = f"s_add_u32 m0, s{sR}, {O_UV}\ns_lshl_b32 s{sT0}, s3, 20\ns_lshl2_add_u32 s{sT1}, s{sH}, s{sKQ}\ns_lshl_b32 s{sT1}, s{sT1}, 6\ns_add_u32 s{sT0}, s{sT0}, s{sT1}\n" if it == 0 else f"s_add_u32 m0, m0, 0x400\ns_add_u32 s{sT0}, s{sT0}, {16*8192}\n"
        o.append(pre + f"buffer_load_dwordx4 v{vW64}, s[36:39], s{sT0} offen lds")
    ops["uv"] = o; o = []
    for it in range(9):
        pre = f"s_add_u32 m0, s{sR}, {O_WO}\ns_mul_i32 s{sT0}, s{sFS}, {32*1152}\ns_mul_i32 s{sT1}, s3, 288\ns_add_u32 s{sT0}, s{sT0}, s{sT1}\n" if it == 0 else "s_add_u32 m0, m0, 0x400\n"
        o.append(pre + f"buffer_load_dwordx4 v{VW2+it}, s[44:47], s{sT0} offen lds")
    ops["o"] = o
    order = cfg["order"].split(",")
    after = {}; tot = sum(len(ops[k]) for k in order); c = 0
    for k in order:
        for x in ops[k]: e(x)
        c += len(ops[k]); after[k] = tot - c
    vF0, vF2, vFB0, vFB2, vW, vW2, vHW, vHR = 16, 17, 18, 19, 20, 21, 22, 23
    lane_tr(30, 31)
    e(f"s_and_b32 s{sT0}, s{sFS}, 1\ns_lshl3_add_u32 s{sT0}, s{sT0}, s{sR}")
    e(f"v_lshl_add_u32 v24, v{vG}, 3, v30\nv_mul_u32_u24 v24, 80, v24\nv_add_u32 v{vF2}, s{sT0}, v24\nv_lshl_add_u32 v{vF0}, v31, 3, v{vF2}")
    e(f"v_lshl_add_u32 v24, v{vG}, 2, v30\nv_mul_u32_u24 v25, 80, v24\nv_add_u32 v{vFB2}, s{sT0}, v25\nv_lshl_add_u32 v{vFB0}, v31, 3, v{vFB2}")
    e(f"v_mul_u32_u24 v24, 0x120, v24\nv_lshl_add_u32 v24, v31, 3, v24\nv_add_u32 v{vW}, s{sR}, v24\nv_mul_u32_u24 v24, 0x120, v30\nv_lshl_add_u32 v24, v31, 3, v24\nv_add_u32 v{vW2}, s{sR}, v24")
    e(f"v_and_b32 v24, 1, v{vN}\nv_lshlrev_b32 v24, 6, v24\nv_lshl_add_u32 v24, v{vG}, 4, v24\nv_bfe_u32 v25, v{vN}, 1, 2\nv_mul_u32_u24 v26, 0x180, v25\nv_add_u32 v{vHR}, v24, v26\nv_add_u32 v{vHR}, {L_HB}, v{vHR}")
    e(f"s_mul_i32 s{sT0}, s3, 384\ns_add_u32 s{sT0}, s{sT0}, {L_HB}\nv_add_u32 v{vHW}, s{sT0}, v24")
    vVR, vVW = 25, 24
    e(f"v_lshlrev_b32 v25, 8, v25\nv_and_b32 v26, 1, v{vN}\nv_lshl_add_u32 v25, v26, 7, v25\nv_lshl_add_u32 v25, v{vG}, 4, v25\nv_add_u32 v{vVR}, {L_VB}, v25")
    e(f"v_bfe_u32 v26, v{vN}, 2, 1\nv_lshl_add_u32 v24, v26, 7, v24\ns_lshl_b32 s{sT0}, s3, 8\ns_add_u32 s{sT0}, s{sT0}, {L_VB}\nv_add_u32 v{vVW}, s{sT0}, v24")
    e(f"v_and_b32 v26, 7, v{vN}\nv_lshlrev_b32 v28, 4, v26\nv_lshlrev_b32 v26, 9, v26\nv_lshl_add_u32 v26, v{vG}, 5, v26\nv_lshrrev_b32 v29, 3, v{vN}\nv_lshl_add_u32 v26, v29, 4, v26")
    e(f"s_lshl_b32 s{sT1}, s{sH}, 14\ns_lshl_b32 s{sT2}, s3, 12\ns_add_u32 s{sT1}, s{sT1}, s{sT2}\ns_add_u32 s{sT1}, s{sT1}, {WS_S3B}")
    e(f"v_lshl_add_u32 v27, v29, 18, v28\nv_lshl_add_u32 v27, v{vG}, 16, v27\nv_add_u32 v28, 0x80000, v28")
    e(f"s_lshl_b32 s{sT2}, s3, 14\ns_lshl_b32 s{sT3}, s{sFS}, 7\ns_add_u32 s{sT2}, s{sT2}, s{sT3}\ns_add_u32 s{sT2}, s{sT2}, {WS_S5}")
    OA = 64
    def ffn1():
        e(f"s_waitcnt vmcnt({after['1']})")
        ts(8)
        F = 128
        for st in range(5):
            b = F + 16*st
            if st < 4:
                e(f"ds_read_b128 {vr(b+12,4)}, v{vXB} offset:{64*st}")
                for T in range(3):
                    for hf in range(2): e(f"ds_read_b64_tr_b16 {vr(b+4*T+2*hf,2)}, v{vF0 if T < 2 else vF2} offset:{O_W1+st*2560+hf*320+T*32}")
            else:
                e(f"ds_read_b64 {vr(b+6,2)}, v15 offset:256")
                for T in range(3): e(f"ds_read_b64_tr_b16 {vr(b+2*T,2)}, v{vFB0 if T < 2 else vFB2} offset:{O_W1+128*80+T*32}")
        for st in range(5):
            b = F + 16*st
            e(f"s_waitcnt lgkmcnt({min(15, 7*(3-st)+4) if st < 4 else 0})")
            for T in range(3):
                if st < 4: mfma32(ACC+4*T, b+4*T, b+12, ACC+4*T if st else None)
                else: mfma16(ACC+4*T, b+2*T, b+6, ACC+4*T)
        masked(rep16(3), "\n".join(f"ds_write_b128 v{vHW}, {vr(ACC+4*T,4)} offset:{128*T}" for T in range(3)))
        e("s_waitcnt lgkmcnt(0)\ns_barrier")
        for T in range(3): e(f"ds_read_b128 {vr(ACC+4*T,4)}, v{vHR} offset:{128*T}")
        e("s_waitcnt lgkmcnt(0)")
        for c in (QP2, "row_ror:4"):
            for r in range(12): dpp("v_add_f32", ACC+r, ACC+r, ACC+r, c)
        H = 100
        for r in range(6): cvtpk(32+r, ACC+2*r, ACC+2*r+1)
        for r in range(6): e(f"v_lshlrev_b32 v{ACC+2*r}, 16, v{32+r}\nv_and_b32 v{ACC+2*r+1}, s{sHI}, v{32+r}")
        e(f"s_mov_b32 s{sC0}, 0xbfb8aa3b")
        for r in range(12): e(f"v_mul_f32 v{32+r}, s{sC0}, v{ACC+r}")
        for r in range(12): e(f"v_exp_f32 v{32+r}, v{32+r}")
        for r in range(12): e(f"v_add_f32 v{32+r}, 1.0, v{32+r}")
        for r in range(12): e(f"v_rcp_f32 v{32+r}, v{32+r}")
        for r in range(12): e(f"v_mul_f32 v{ACC+r}, v{ACC+r}, v{32+r}")
        for r in range(6): cvtpk(H+r, ACC+2*r, ACC+2*r+1)
        setmask(sM0, 0xFFFF)
        for r in (4, 5): e(f"v_cndmask_b32 v{H+r}, 0, v{H+r}, s[{sM0}:{sM0+1}]")
    def ffn2(first):
        H = 100; F = 128
        e(f"s_waitcnt vmcnt({after['2']})")
        ts(9)
        for tt in range(9):
            for T in range(2): e(f"ds_read_b64_tr_b16 {vr(F+6*tt+2*T,2)}, v{vW} offset:{O_W2+tt*32+T*4608}")
            e(f"ds_read_b64_tr_b16 {vr(F+6*tt+4,2)}, v{vW2} offset:{O_W2+32*288+tt*32}")
        for tt in range(9):
            e(f"s_waitcnt lgkmcnt({min(15, 3*(8-tt))})")
            mfma32(OA+4*tt, H, F+6*tt, None if first else OA+4*tt)
        for tt in range(9): mfma16(OA+4*tt, H+4, F+6*tt+4, OA+4*tt)
        ts(10)
    UV = 220; WOF = 184
    def attn_tail(first):
        if STOP <= 3: e("s_waitcnt vmcnt(0)\ns_branch L_done")
        e(f"s_waitcnt vmcnt({min(after['uv'], after['o'])})")
        ts(11)
        it3 = [((lambda fl, t=t: f"buffer_load_dwordx4 {vr(G+4*t,4)}, v26, s[40:43], s{sT1} offen offset:{128*t} {fl}"), G+4*t+2) for t in range(4)]
        for x in it3: e(x[0]("sc1"))
        for st in range(4):
            for T in range(2):
                for hf in range(2): e(f"ds_read_b64_tr_b16 {vr(UV+8*st+4*T+2*hf,2)}, v{vTA0+T} offset:{O_UV+st*2048+hf*256}")
        for tt in range(9):
            for T in range(2): e(f"ds_read_b64_tr_b16 {vr(WOF+4*tt+2*T,2)}, v{vW} offset:{O_WO+tt*32+T*4608}")
        setmask(sM0, rep16(0xAAAA))
        gather(it3, 3)
        ts(12)
        e(f"v_mov_b32 v60, v{G+3}")
        movdpp(61, G+3, "row_ror:8")
        merge_u(G)
        e("s_waitcnt lgkmcnt(0)")
        for t in range(4):
            for T in range(2): mfma32(ACC+4*T, UV+8*t+4*T, G+4*t, ACC+4*T if t else None)
        dpp("v_max_f32", 62, 60, 60, QP1); dpp("v_max_f32", 62, 62, 62, QP2)
        e("v_sub_f32 v60, v60, v62\nv_exp_f32 v60, v60\nv_mul_f32 v61, v60, v61")
        dpp("v_add_f32", 61, 61, 61, QP1); dpp("v_add_f32", 61, 61, 61, QP2)
        e("v_rcp_f32 v61, v61\nv_mul_f32 v60, v60, v61")
        def pre():
            for r in range(8): e(f"v_mul_f32 v{ACC+r}, v{ACC+r}, v60")
        quadsel(56, pre)
        masked(rep16(0x33), f"ds_write_b128 v{vVW}, v[56:59]")
        e("s_waitcnt lgkmcnt(0)\ns_barrier")
        for T in range(2): e(f"ds_read_b128 {vr(ACC+4*T,4)}, v{vVR} offset:{64*T}")
        e("s_waitcnt lgkmcnt(0)")
        for c in (QP2, "row_ror:4"):
            for r in range(8): dpp("v_add_f32", ACC+r, ACC+r, ACC+r, c)
        for r in range(4): cvtpk(56+r, ACC+2*r, ACC+2*r+1)
        ts(13)
        for tt in range(9): mfma32(OA+4*tt, 56, WOF+4*tt, None if first else OA+4*tt)
    seq = ["1", "2", "t"] if order.index("2") < max(order.index("uv"), order.index("o")) else ["1", "t", "2"]
    if order.index("1") > max(order.index("uv"), order.index("o")): seq = ["t", "1", "2"]
    seq = cfg.get("seq", ",".join(seq)).split(",")
    first = True
    for k in seq:
        if k == "1": ffn1()
        elif k == "2": ffn2(first); first = False
        else: attn_tail(first); first = False
    e(f"v_mov_b32 v34, v{vTAG}\nv_mov_b32 v35, v{vTAG}\nv_mov_b32 v38, v{vTAG}\nv_mov_b32 v39, v{vTAG}")
    nopad_on()
    for g in range(4):
        setexec(0xFFFF << (16*g))
        cvtpk(32, OA+8*g, OA+8*g+1); cvtpk(33, OA+8*g+4, OA+8*g+5)
    e("s_mov_b64 exec, -1")
    nopad_off()
    e(f"buffer_store_dwordx4 v[32:35], v27, s[40:43], s{sT2} offen sc1")
    cvtpk(36, OA+32, OA+33)
    movdpp(37, 36, "row_ror:8")
    masked(0xFF, f"buffer_store_dwordx4 v[36:39], v28, s[40:43], s{sT2} offen sc1")
    ts(14)
    e("s_branch L_done")
    a.L += cold[0].L
    e("; WALKEND")

    cold[0] = Asm()
    e("L_attn:")
    e(f"s_lshr_b32 s{sB}, s{sX}, 2\ns_lshl4_add_u32 s{sT0}, s{sX}, s{sI}\ns_lshl_b32 s{sT0}, s{sT0}, 17\ns_lshl_b32 s{sT1}, s3, 15")
    VC = 8
    for q in range(8):
        f = ((q & 7) << 1) | ((q >> 2) & 1)
        e(f"v_xor_b32 v{VC+q}, {hex(16*f)}, v{vL16}" if f else f"v_mov_b32 v{VC+q}, v{vL16}")
    e(f"s_getreg_b32 s{sT9}, hwreg(HW_REG_XCC_ID, 0, 4)")
    e("s_waitcnt lgkmcnt(0)")
    ts(1)
    e(f"s_load_dword s{sTAG}, s[26:27], 0")
    srd(28, 6, 131072, add=sT0)
    def dma(lo, hi):
        for row in range(lo, hi):
            if row % 4 == 0: e(f"s_add_u32 m0, s{sT1}, {row*1024}")
            e(f"buffer_load_dwordx4 v{VC+(row&7)}, s[28:31], m0 offen offset:{(row&3)*1024} lds")
    AW0 = cfg["aw0"]
    if not cfg.get("adelay"): dma(0, AW0)
    srd(WS, 26, WS_SIZE); srd(32, 4, 2304); srd(44, 22, 2304)
    e("; WALK a")
    e(f"v_and_b32 v5, 7, v{vN}\nv_lshlrev_b32 v5, 1, v5\nv_bfe_u32 v6, v{vN}, 2, 1\nv_or_b32 v5, v5, v6\nv_xor_b32 v5, v5, v{vG}\nv_lshlrev_b32 v5, 4, v5")
    e(f"v_lshl_add_u32 v5, v{vN}, 10, v5\nv_add_u32 v16, s{sT1}, v5\nv_xor_b32 v17, 64, v16\nv_xor_b32 v18, 0x80, v16\nv_xor_b32 v19, 0xc0, v16")
    e(f"v_xor_b32 v5, v{vG}, v{vN}\nv_lshlrev_b32 v5, 4, v5\nv_lshl_add_u32 v5, v{vN}, 10, v5\nv_add_u32 v20, {L_QA}, v5\nv_xor_b32 v21, 64, v20\nv_xor_b32 v22, 0x80, v20\nv_xor_b32 v23, 0xc0, v20")
    e(f"s_lshl_b32 s{sT2}, s3, 2\nv_lshrrev_b32 v5, 1, v0\nv_xor_b32 v5, s{sT2}, v5\nv_lshlrev_b32 v5, 4, v5\nv_and_b32 v6, 1, v0\nv_lshl_add_u32 v5, v6, 3, v5\ns_lshl_b32 s{sT2}, s3, 12\ns_add_u32 s{sT2}, s{sT2}, {L_QA}\nv_add_u32 v24, s{sT2}, v5")
    for ee in range(1, 4): e(f"v_xor_b32 v{24+ee}, {16*ee}, v24\nv_add_u32 v{24+ee}, {hex(1024*ee)}, v{24+ee}")
    VA = 96
    e(f"v_bfe_u32 v5, v0, 2, 2\nv_and_b32 v6, 1, v{vG}\nv_lshl_add_u32 v6, v6, 2, v5\nv_lshlrev_b32 v7, 1, v6\nv_lshrrev_b32 v6, 2, v6\nv_or_b32 v7, v7, v6")
    e(f"v_bfe_u32 v6, v0, 1, 1\nv_xor_b32 v7, v7, v6\nv_lshlrev_b32 v7, 4, v7\nv_and_b32 v6, 1, v0\nv_lshl_add_u32 v7, v6, 3, v7")
    e(f"v_lshl_add_u32 v5, v{vG}, 2, v5\nv_lshl_add_u32 v7, v5, 10, v7\ns_lshl_b32 s{sT2}, s3, 8\nv_add_u32 v{VA}, s{sT2}, v7")
    for ct in range(1, 8): e(f"v_xor_b32 v{VA+ct}, {hex(32*ct)}, v{VA}")
    for ct in range(8): e(f"v_add_u32 v{VA+8+ct}, 0x10000, v{VA+ct}")
    e(f"s_lshl_b32 s{sT2}, s{sB}, 16\ns_lshl_b32 s{sT3}, s3, 13\ns_add_u32 s{sT2}, s{sT2}, s{sT3}\ns_add_u32 s{sT2}, s{sT2}, {WS_S2}\ns_add_u32 s{sT3}, s{sT2}, 0x1000\ns_add_u32 s{sT4}, s{sT2}, 0x8000\ns_add_u32 s{sT5}, s{sT2}, 0x9000")
    e(f"v_lshlrev_b32 v5, 7, v{vN}\ns_lshl_b32 s{sT6}, s{sX}, 11\ns_add_u32 s{sT6}, s{sT6}, {WS_ID}")
    if cfg.get("adelay"): dma(0, AW0)
    e("s_waitcnt lgkmcnt(0)")
    mktag()
    nst = 0
    lid = a.lab("L_noid")
    e(f"s_cmp_lg_u32 s3, 0\ns_cbranch_scc1 {lid}")
    e(f"v_mov_b32 v28, s{sT9}\nv_mov_b32 v29, s{sT9}\nv_mov_b32 v30, v{vTAG}\nv_mov_b32 v31, v{vTAG}\ns_lshl_b32 s{sT7}, s{sI}, 7\ns_add_u32 s{sT7}, s{sT7}, s{sT6}")
    masked(0xFF, f"buffer_store_dwordx4 v[28:31], v{vL16}, s[40:43], s{sT7} offen sc1")
    e(f"{lid}:")
    issued = AW0
    def wait_landed(n):
        e(f"s_waitcnt vmcnt({issued-n+wl_extra[0]})")
    wl_extra = [0]
    if AW0 < 32:
        step = cfg.get("astep", 4); first_n = cfg.get("afirst", 4)
        n = first_n
        while issued < 32:
            wait_landed(n); k = min(32, issued + step); dma(issued, k); issued = k; n += step
    KR = 128; VR = 128
    def kread(T, t): return f"ds_read_b128 {ar(KR+64*T+4*t,4)}, v{16+(t&3)} offset:{T*16384+(t>>2)*256}"
    def vread(ct, kw, T): return f"ds_read_b64_tr_b16 {vr(VR+16*ct+4*kw+2*T,2)}, v{VA+8*(kw>>1)+ct} offset:{(kw&1)*32768+T*16384}"
    wait_landed(16)
    ts(2)
    for t in range(16): e(kread(0, t))
    def go_pub():
        l = a.lab("L_nogo")
        e(f"s_cmp_lg_u32 s3, 0\ns_cbranch_scc1 {l}")
        e(f"s_lshl4_add_u32 s{sT7}, s{sX}, s{sI}\ns_lshl_b32 s{sT7}, s{sT7}, 7\ns_add_u32 s{sT7}, s{sT7}, {WS_GO}")
        masked(0xFF, f"buffer_store_dwordx4 v[28:31], v{vL16}, s[40:43], s{sT7} offen sc1")
        e(f"{l}:")
    if cfg["go"] and cfg["go_at"] <= 16: go_pub()
    if cfg["vearly"]:
        e("s_barrier")
        for kw in range(4):
            for ct in range(8): e(vread(ct, kw, 0))
    if cfg["go"] and 16 < cfg["go_at"] <= 32 - cfg["qa_at"]:
        wait_landed(cfg["go_at"]); go_pub()
    if STOP <= 2:
        e("s_waitcnt vmcnt(0)\ns_branch L_done")
    GA = 32
    def qld(HT, k):
        i = 8*HT + k; ee = k >> 1; hf = k & 1
        return ((lambda fl: f"buffer_load_dwordx4 {vr(GA+4*i,4)}, v{vL16}, s[40:43], s{sT2+2*HT+(ee>>1)} offen offset:{(ee&1)*2048+hf*1024} {fl}"), GA+4*i+2)
    idit = ((lambda fl: f"buffer_load_dwordx4 v[112:115], v5, s[40:43], s{sT6} offen {fl}"), 114)
    itq = [[qld(HT, k) for k in range(8)] for HT in range(2)]
    itq[1].append(idit)
    wait_landed(32 - cfg["qa_at"])
    ts(3)
    for HT in range(2):
        for x in itq[HT]: e(x[0](""))
    wl_extra[0] = 17
    wait_landed(32)
    ts(4)
    for t in range(16): e(kread(1, t))
    if cfg["go"] and cfg["go_at"] > 32 - cfg["qa_at"]: go_pub()
    S = 32
    def qapost(HT): return lambda k: (e(f"ds_write_b64 v{24+(k>>1)}, {vr(GA+4*(8*HT+k),2)} offset:{HT*16384+(k&1)*512}") if k < 8 else None)
    def qaread(HT, t): return f"ds_read_b128 {ar(64*HT+4*t,4)}, v{20+(t&3)} offset:{HT*16384+(t>>2)*256}"
    vr1 = [vread(ct, kw, 1) for kw in range(4) for ct in range(8)]
    if not cfg["vearly"]: vr1 = [vread(ct, kw, 0) for kw in range(4) for ct in range(8)] + vr1
    gather(itq[0], 4, post=qapost(0), extra=9)
    ts(5)
    e("s_waitcnt lgkmcnt(0)\ns_barrier")
    for t in range(16): e(qaread(0, t))
    for t in range(16):
        e(f"s_waitcnt lgkmcnt({15-t})")
        for T in range(2): mfma32(S+4*T, ar(KR+64*T+4*t,4), ar(4*t,4), S+4*T if t else None)
    gather(itq[1], 5, post=qapost(1))
    ts(6)
    e(f"v_cmp_ne_u32 vcc, s{sT9}, v112\ns_mov_b64 s[{sM0}:{sM0+1}], vcc")
    sSAME = sT9
    e(f"s_cmp_eq_u64 s[{sM0}:{sM0+1}], 0\ns_cselect_b32 s{sSAME}, 1, 0")
    e("s_waitcnt lgkmcnt(0)\ns_barrier")
    for t in range(16): e(qaread(1, t))
    nv = len(vr1); per = nv // 16
    def sm_max(HT):
        s = S + 8*HT; m = 56 + HT
        o = Asm()
        o(f"v_max3_f32 v{m}, v{s}, v{s+1}, v{s+2}\nv_max3_f32 v58, v{s+3}, v{s+4}, v{s+5}\nv_max3_f32 v{m}, v{m}, v{s+6}, v{s+7}\nv_max_f32 v{m}, v{m}, v58")
        o(f"v_mov_b32 v58, v{m}\nv_permlane16_swap_b32 v58, v{m}\nv_max_f32 v{m}, v{m}, v58\nv_mov_b32 v58, v{m}\nv_permlane32_swap_b32 v58, v{m}\nv_max_f32 v{m}, v{m}, v58\nv_ceil_f32 v{m}, v{m}")
        for r in range(8): o(f"v_sub_f32 v{s+r}, v{s+r}, v{m}")
        for r in range(8): o(f"v_exp_f32 v{s+r}, v{s+r}")
        for r in range(4): o(f"v_cvt_pk_bf16_f32 v{48+4*HT+r}, v{s+2*r}, v{s+2*r+1}")
        return o.L
    sm0 = sm_max(0); k = 0
    for t in range(16):
        e(f"s_waitcnt lgkmcnt({15-t})" if t < 15 else "s_waitcnt lgkmcnt(0)")
        for T in range(2):
            mfma32(S+8+4*T, ar(KR+64*T+4*t,4), ar(64+4*t,4), S+8+4*T if t else None)
            for x in sm0[k:k+1]: e(x)
            k += 1
        if t == 15: e("s_barrier")
    for x in sm0[k:]: e(x)
    ts(7)
    e(f"s_lshl_b32 s{sT2}, s3, 11\ns_add_u32 s{sT2}, s{sT2}, {L_PB}\nv_add_u32 v5, s{sT2}, v{vL16}\nds_write_b128 v5, v[48:51]")
    e(f"s_lshl_b32 s{sT2}, s3, 2\nv_lshlrev_b32 v6, 5, v{vN}\nv_add_u32 v6, {L_MX}, v6\nv_add_u32 v7, s{sT2}, v6\nds_write_b32 v7, v56")
    for x in interleave(sm_max(1), vr1, start=0, every=1, per=(nv + 30) // 31): e(x)
    e(f"ds_write_b128 v5, v[52:55] offset:1024\nds_write_b32 v7, v57 offset:16")
    e(f"v_add_u32 v5, {L_PB}, v{vL16}")
    e(f"v_bfe_u32 v30, v{vN}, 1, 2\nv_mul_u32_u24 v30, {hex(CS)}, v30\nv_and_b32 v31, 1, v{vN}\nv_lshl_add_u32 v30, v31, 8, v30\nv_lshrrev_b32 v31, 3, v{vN}\nv_lshl_add_u32 v30, v31, 6, v30\nv_lshl_add_u32 v30, v{vG}, 4, v30\nv_add_u32 v31, {hex(4*CS)}, v30")
    e(f"s_mul_i32 s{sT5}, s{sX}, {16*CS}\ns_lshl_b32 s{sT3}, s3, 13\ns_add_u32 s{sT5}, s{sT5}, s{sT3}\ns_add_u32 s{sT5}, s{sT5}, {WS_S3A}\ns_lshl_b32 s{sT4}, s{sI}, 9\ns_add_u32 s{sT2}, s{sT5}, s{sT4}\ns_add_u32 s{sT3}, s{sT2}, {8*CS}")
    e(f"s_lshl2_add_u32 s{sT6}, s{sX}, s3\ns_lshl_b32 s{sT6}, s{sT6}, 13\ns_add_u32 s{sT6}, s{sT6}, {WS_MA}\ns_add_u32 s{sT4}, s{sT4}, s{sT6}")
    e(f"s_mov_b32 s{sC0}, 0x800080")
    e("s_waitcnt lgkmcnt(0)\ns_barrier")
    ts(8)
    PF = 96
    e("ds_read_b128 v[56:59], v6\nds_read_b128 v[60:63], v6 offset:16")
    for HT in range(2):
        for kw in range(4): e(f"ds_read_b128 {vr(PF+16*HT+4*kw,4)}, v5 offset:{kw*2048+HT*1024}")
    for r in range(4): e(f"v_mov_b32 v{24+r}, 0x3f803f80")
    e("s_waitcnt lgkmcnt(8)")
    for HT in range(2):
        m = 56 + 4*HT; M = 28 + HT
        e(f"v_max3_f32 v{M}, v{m}, v{m+1}, v{m+2}\nv_max_f32 v{M}, v{M}, v{m+3}")
        for kw in range(4): e(f"v_sub_f32 v{m+kw}, v{M}, v{m+kw}")
        for kw in range(4): e(f"v_cvt_u32_f32 v{m+kw}, v{m+kw}")
        for kw in range(4): e(f"v_min_u32 v{m+kw}, 0xff, v{m+kw}")
        for kw in range(4): e(f"v_mul_u32_u24 v{m+kw}, s{sC0}, v{m+kw}")
    def padj(HT, kw): return [f"v_pk_sub_u16 v{PF+16*HT+4*kw+r}, v{PF+16*HT+4*kw+r}, v{56+4*HT+kw} clamp" for r in range(4)]
    for kw in range(4):
        e(f"s_waitcnt lgkmcnt({7-kw})")
        for x in padj(0, kw): e(x)
    e("s_waitcnt lgkmcnt(0)")
    for kw in range(4):
        for x in padj(1, kw): e(x)
    O = 32
    def pv(fl):
        batches = [(q, HT) for q in range(2) for HT in range(2)]
        def pack(q, HT):
            A = O + 32*HT + 16*q
            o = [f"v_cvt_pk_bf16_f32 v{A+k}, v{A+2*k}, v{A+2*k+1}" for k in range(8)]
            X = A; Y = A + 4; Z = A + 8
            o += [f"v_mov_b32 v{Z+r}, v{X+r}" for r in range(4)]
            o += [f"v_mov_b32_dpp v{X+r}, v{Y+r} row_ror:8 row_mask:0xf bank_mask:0xc" for r in range(4)]
            o += [f"buffer_store_dwordx4 {vr(X,4)}, v30, s[40:43], s{sT2+HT} offen offset:{128*q} {fl}"]
            o += [f"v_mov_b32_dpp v{Y+r}, v{Z+r} row_ror:8 row_mask:0xf bank_mask:0x3" for r in range(4)]
            o += [f"buffer_store_dwordx4 {vr(Y,4)}, v31, s[40:43], s{sT2+HT} offen offset:{128*q} {fl}"]
            return o
        prev = None
        for bi in range(5):
            mf = []
            if bi < 4:
                q, HT = batches[bi]
                for kw in range(4):
                    for cc in range(4):
                        ct = 4*q + cc; acc = O + 32*HT + 4*ct
                        mf.append(f"v_mfma_f32_16x16x32_bf16 {vr(acc,4)}, {vr(VR+16*ct+4*kw,4)}, {vr(PF+16*HT+4*kw,4)}, {vr(acc,4) if kw else 0}")
            else:
                for kw in range(4):
                    for HT in range(2): mf.append(f"v_mfma_f32_16x16x32_bf16 {vr(16+4*HT,4)}, v[24:27], {vr(PF+16*HT+4*kw,4)}, {vr(16+4*HT,4) if kw else 0}")
            p = pack(*batches[bi-1]) if bi else []
            k = 0
            for i, x in enumerate(mf):
                e(x)
                if i >= 2:
                    n = 2 if bi < 4 else 4
                    for y in p[k:k+n]: e(y)
                    k += n
            for y in p[k:]: e(y)
        ts(9)
        setmask(sM0, 0x0000FFFF0000FFFF)
        e(f"v_cndmask_b32 v8, v29, v28, s[{sM0}:{sM0+1}]\nv_cndmask_b32 v9, v20, v16, s[{sM0}:{sM0+1}]\nv_mov_b32 v10, v{vTAG}\nv_mov_b32 v11, v{vTAG}")
        e("s_waitcnt vmcnt(0)")
        ts(10)
        masked(0xFFFFFFFF, f"buffer_store_dwordx4 v[8:11], v{vL16}, s[40:43], s{sT4} offen {fl}")
    e(f"s_cmp_eq_u32 s{sSAME}, 0\ns_cbranch_scc1 L_pv_far")
    pv("")
    e("L_pv_done:")
    sv = cur[0]; cur[0] = far = Asm(); e("L_pv_far:"); pv("sc1"); e("s_branch L_pv_done"); cur[0] = sv
    if STOP <= 3: e("s_branch L_done")
    e(f"v_and_b32 v5, 3, v{vN}\nv_lshl_add_u32 v5, v5, 2, v{vG}\nv_lshlrev_b32 v5, 9, v5\nv_lshrrev_b32 v6, 3, v{vN}\nv_lshl_add_u32 v5, v6, 4, v5")
    e(f"s_lshl_b32 s{sT2}, s{sI}, 5\ns_add_u32 s{sT6}, s{sT6}, s{sT2}")
    itm = [((lambda fl: f"buffer_load_dwordx4 v[32:35], v5, s[40:43], s{sT6} offen {fl}"), 34)]
    e(itm[0][0]("sc1"))
    e(f"v_and_b32 v7, 7, v{vN}\nv_lshlrev_b32 v7, 4, v7\nv_lshl_add_u32 v7, v6, 8, v7\nv_lshl_add_u32 v7, v{vG}, 9, v7")
    e(f"s_mul_i32 s{sT2}, s{sI}, {CS}\ns_add_u32 s{sT2}, s{sT2}, s{sT5}\ns_add_u32 s{sT3}, s{sT2}, 0x1000")
    MK = 112; AM = 96; PAY = 64
    e(f"v_and_b32 v8, 1, v{vN}\nv_lshlrev_b32 v8, 4, v8\nv_mov_b32 v9, 0xffff\nv_lshlrev_b32 v8, v8, v9\nv_bfe_u32 v9, v{vN}, 1, 2")
    for r in range(4): e(f"v_cmp_eq_u32 vcc, {r}, v9\nv_cndmask_b32 v{MK+r}, 0, v8, vcc")
    e(f"v_lshrrev_b32 v9, 1, v{vG}\nv_lshlrev_b32 v8, 4, v9\nv_bfe_u32 v9, v{vN}, 2, 1\nv_lshl_add_u32 v8, v9, 3, v8\nv_and_b32 v9, 1, v{vG}\nv_lshl_add_u32 v8, v9, 2, v8\nv_and_b32 v9, 3, v{vN}\nv_add_u32 v8, v8, v9\nv_lshlrev_b32 v8, 4, v8\nv_lshl_add_u32 v8, v6, 14, v8")
    e(f"s_lshl_b32 s{sT4}, s{sI}, 15\ns_lshl_b32 s{sT7}, s3, 12\ns_add_u32 s{sT4}, s{sT4}, s{sT7}\ns_lshl_b32 s{sT7}, s{sX}, 9\ns_add_u32 s{sT4}, s{sT4}, s{sT7}\ns_add_u32 s{sT4}, s{sT4}, {WS_S3B}")
    setmask(sM0, rep16(0xAAAA))
    gather(itm, 6)
    ts(11)
    for pq in range(4):
        for q in range(2): e(f"buffer_load_dwordx4 {vr(PAY+8*pq+4*q,4)}, v7, s[40:43], s{sT2+(pq>>1)} offen offset:{(pq&1)*2048+q*128} sc1")
    dpp("v_max_f32", 36, 32, 32, QP1); dpp("v_max_f32", 36, 36, 36, QP2)
    swap16(36, 37, "v_max_f32"); swap32(36, 37, "v_max_f32")
    e("v_sub_f32 v37, v32, v36\nv_exp_f32 v37, v37\nv_mul_f32 v38, v37, v33")
    cvtpk(37, 37, 37)
    for pq in range(4):
        for r in range(4): e(f"v_and_b32_dpp v{AM+4*pq+r}, v37, v{MK+r} quad_perm:[{pq},{pq},{pq},{pq}] row_mask:0xf bank_mask:0xf")
    dpp("v_add_f32", 38, 38, 38, QP1); dpp("v_add_f32", 38, 38, 38, QP2)
    swap16(38, 39, "v_add_f32"); swap32(38, 39, "v_add_f32")
    e(f"v_cndmask_b32 v51, v36, v38, s[{sM0}:{sM0+1}]\nv_mov_b32 v50, v{vTAG}")
    for pq in range(4):
        for q in range(2):
            e(f"s_waitcnt vmcnt({7-2*pq-q})")
            mfma32(40+4*q, AM+4*pq, PAY+8*pq+4*q, 40+4*q if pq else None)
    ts(12)
    cvtpk(48, 40, 41); cvtpk(49, 42, 43); cvtpk(52, 44, 45); cvtpk(53, 46, 47)
    e("v_permlane32_swap_b32 v48, v52\nv_permlane32_swap_b32 v49, v53")
    movdpp(48, 52, "quad_perm:[0,1,2,3]", "0xc"); movdpp(49, 53, "quad_perm:[0,1,2,3]", "0xc")
    e(f"buffer_store_dwordx4 v[48:51], v8, s[40:43], s{sT4} offen sc1")
    ts(13)
    if STOP <= 4: e("s_branch L_done")
    if cfg["wb"]:
        e(f"s_or_b32 s{sT2}, s{sI}, s3\ns_cmp_lg_u32 s{sT2}, 0\ns_cbranch_scc1 L_nowb\nbuffer_wbl2 sc1\ns_branch L_done\nL_nowb:")
    e(f"s_cmp_lt_u32 s{sI}, 11\ns_cbranch_scc1 L_done")
    e(f"s_sub_u32 s{sT1}, s{sI}, 11\ns_lshl3_add_u32 s{sT1}, s{sT1}, s{sX}\ns_cmp_ge_u32 s{sT1}, 36\ns_cbranch_scc1 L_done")
    e(f"s_lshl_b32 s{sT2}, s{sT1}, 14\ns_lshl_b32 s{sT3}, s3, 12\ns_add_u32 s{sT2}, s{sT2}, s{sT3}\ns_add_u32 s{sT2}, s{sT2}, {WS_S5}")
    it5 = [((lambda fl, k=k: f"buffer_load_dwordx4 {vr(64+4*k,4)}, v{vL16}, s[40:43], s{sT2} offen offset:{1024*k} {fl}"), 64+4*k+2) for k in range(4)]
    e(f"s_and_b32 s{sT3}, s{sT1}, 3\ns_mul_i32 s{sT3}, s{sT3}, 144\ns_bfe_u32 s{sT4}, s{sT1}, 0x20002\ns_lshl_b32 s{sT4}, s{sT4}, 5\ns_lshr_b32 s{sT5}, s{sT1}, 4\ns_lshl3_add_u32 s{sT4}, s{sT5}, s{sT4}")
    e(f"s_cmp_ge_u32 s{sT1}, 32\ns_cselect_b32 s{sT4}, 128, s{sT4}\ns_cselect_b32 s{sT5}, 16, 32\ns_add_u32 s{sT3}, s{sT3}, s{sT4}\ns_lshl_b32 s{sT3}, s{sT3}, 1")
    e(f"v_and_b32 v6, 7, v0\nv_lshlrev_b32 v5, 1, v6\nv_bfe_u32 v7, v0, 3, 1\nv_mul_u32_u24 v8, 0x480, v7\nv_add_u32 v5, v5, v8\nv_bfe_u32 v8, v0, 4, 1\nv_mul_u32_u24 v9, s{sT5}, v8\nv_add_u32 v5, v5, v9")
    e(f"buffer_load_ushort v31, v5, s[32:35], s{sT3} offen")
    for x in it5: e(x[0]("sc1"))
    e(f"v_lshlrev_b32 v6, 4, v6\nv_lshl_add_u32 v8, v8, 1, v7\nv_lshl_add_u32 v6, v8, 2, v6\nv_add_u32 v6, {L_FB}, v6\ns_lshl_b32 s{sT4}, s3, 7\ns_add_u32 s{sT4}, s{sT4}, {L_FB}\nv_add_u32 v7, s{sT4}, v{vL16}")
    e(f"v_and_b32 v8, 1, v{vN}\nv_lshlrev_b32 v8, 4, v8\nv_mov_b32 v9, 0x3f80\nv_lshlrev_b32 v8, v8, v9\nv_bfe_u32 v9, v{vN}, 1, 1\nv_cmp_eq_u32 vcc, 0, v9\nv_cndmask_b32 v10, 0, v8, vcc\nv_cndmask_b32 v11, v8, 0, vcc")
    gather(it5, 7, post=lambda k: mfma16(40, 10, 64+4*k, 40 if k else None))
    ts(14)
    for r in range(4): dpp("v_add_f32", 40+r, 40+r, 40+r, "row_ror:8")
    masked(0xFF, "ds_write_b128 v7, v[40:43]")
    e("s_waitcnt lgkmcnt(0)\ns_barrier\ns_cmp_lg_u32 s3, 0\ns_cbranch_scc1 L_done")
    for w in range(4): e(f"ds_read_b32 v{40+w}, v6 offset:{128*w}")
    e("v_lshlrev_b32 v31, 16, v31\ns_waitcnt lgkmcnt(0)\nv_add_f32 v40, v40, v41\nv_add_f32 v42, v42, v43\nv_add_f32 v40, v40, v42\nv_add_f32 v40, v40, v31")
    cvtpk(40, 40, 40)
    nopad_on()
    setexec(0xFFFFFFFF)
    e(f"buffer_store_short v40, v5, s[44:47], s{sT3} offen")
    e(f"s_cmp_lg_u32 s{sT1}, 0\ns_cbranch_scc1 L_done")
    e("s_mov_b64 exec, 1")
    e(f"buffer_store_dword v{vTAG}, off, s[40:43], 0 sc1")
    nopad_off()
    e("s_branch L_done")
    a.L += cold[0].L
    e("; WALKEND")
    a.L += far.L
    e("L_done:")
    if cfg.get("amp"):
        wg, wv, i0, i1, K = cfg["amp"]
        e(f"s_cmp_lg_u32 s2, {wg}\ns_cbranch_scc1 L_amp_no\ns_cmp_lg_u32 s3, {wv}\ns_cbranch_scc1 L_amp_no")
        e(f"s_waitcnt lgkmcnt(0)\ns_memrealtime s[6:7]\ns_waitcnt lgkmcnt(0)")
        if i1 == 15: e(f"s_sub_u32 s4, s6, s{68+2*i0}")
        else: e(f"s_sub_u32 s4, s{68+2*i1}, s{68+2*i0}")
        e(f"s_mul_i32 s4, s4, {K}\ns_min_u32 s4, s4, 100000\nL_amp:\ns_memrealtime s[8:9]\ns_waitcnt lgkmcnt(0)\ns_sub_u32 s5, s8, s6\ns_cmp_lt_u32 s5, s4\ns_cbranch_scc1 L_amp\nL_amp_no:")
    if TS == 1:
        e("s_mov_b64 exec, -1\ns_waitcnt lgkmcnt(0)")
        e(f"s_lshl2_add_u32 s4, s2, s3\ns_lshl_b32 s4, s4, 6\ns_add_u32 s4, s4, {WS_TS}\ns_memrealtime s[6:7]\nv_lshlrev_b32 v1, 2, v0\nv_mov_b32 v2, 0")
        for i in range(15): e(f"v_writelane_b32 v2, s{68+2*i}, {i}")
        e("s_waitcnt lgkmcnt(0)\nv_writelane_b32 v2, s6, 15")
        e(f"s_mov_b64 exec, 0xffff\nbuffer_store_dword v2, v1, s[40:43], s4 offen")
    e("L_end:\ns_endpgm")
    for c in sorted(set(fails)):
        e(f"L_fail{c}:\ns_movk_i32 s4, {c}\ns_branch L_fail")
    if fails:
        e("L_fail:\ns_mov_b64 exec, 1\ns_mov_b32 s28, s24\ns_mov_b32 s29, s25\ns_mov_b32 s30, 256\ns_mov_b32 s31, 0x20000\ns_lshl_b32 s5, s4, 2\nv_mov_b32 v1, 1\nv_mov_b32 v2, s5\nbuffer_atomic_add v1, v2, s[28:31], 0 offen\ns_endpgm")

    lines = a.L
    head = '.amdgcn_target "amdgcn-amd-amdhsa--gfx950"\n.text\n'
    lines = finish(lines, cfg, head)
    hdr = open("cdna_kernels/" + NAME + ".s.ref").read().split("; @launch")[0]
    out = hdr + f"; @launch grid=(256,1,1) block=(256,1,1) lds={LDS_BYTES}\n" + head
    out += f".globl {NAME}_kernel\n.p2align 12\n.type {NAME}_kernel,@function\n{NAME}_kernel:\n" + "\n".join(lines) + "\n"
    out += f""".section .rodata,"a"
.p2align 6
.amdhsa_kernel {NAME}_kernel
  .amdhsa_next_free_vgpr 512
  .amdhsa_next_free_sgpr 102
  .amdhsa_accum_offset 256
  .amdhsa_group_segment_fixed_size 0
  .amdhsa_kernarg_size 96
  .amdhsa_user_sgpr_count 2
  .amdhsa_user_sgpr_kernarg_segment_ptr 1
  .amdhsa_system_sgpr_workgroup_id_x 1
.end_amdhsa_kernel
"""
    return out

def finish(lines, cfg, head):
    body = pad_hazards(lines)
    if not cfg["pads"]:
        return [l for l in body if not l.startswith(";")]
    roles = ["h", "a"]
    def build(r, npads):
        tree = []
        def rec(lo, hi):
            if hi - lo == 1: tree.append(f"s_branch L_pad{r}{lo}"); return
            mid = (lo + hi) // 2
            tree.append(f"s_cmp_lt_u32 s{cfg.get('sW', 23)}, {mid}"); tree.append(f"s_cbranch_scc0 L_wt{r}{mid}")
            rec(lo, mid); tree.append(f"L_wt{r}{mid}:"); rec(mid, hi)
        sw = cfg.get('sW', 23)
        pre = [f"s_lshl2_add_u32 s{sw}, s53, s3", f"s_cmp_ge_u32 s{sw}, {npads}", f"s_cbranch_scc1 L_back{r}", "s_mov_b64 exec, 0"]
        rec(0, npads)
        return ["; NOPAD_ON"] + pre + tree + [f"L_back{r}:", "s_mov_b64 exec, -1", "; NOPAD_OFF"]
    npads = {"h": 16, "a": 16}
    step = cfg["padstep"]
    for _ in range(8):
        cur = list(body)
        for r in roles:
            i = cur.index(f"; WALK {r}"); cur = cur[:i] + build(r, npads[r]) + cur[i+1:]
        labs = [f"L_pad{r}{k}:" for r in roles for k in range(npads[r])]
        sz = sizes_of([l if not l.startswith(".") else "" for l in cur] + labs, head + "kstart:\n", "")[:len(cur)]
        out = []; off = 0; nxt = None; k = {"h": 0, "a": 0}; nop = False; role = None
        for l, s in zip(cur, sz):
            if l == "; NOPAD_ON": nop = True
            if l == "; NOPAD_OFF": nop = False
            if l.startswith("L_back"): role = l[6]; nxt = (off // step + 1) * step
            if l == "; WALKEND": role = None
            if role and s and off >= nxt and not nop:
                out.append(f"L_pad{role}{k[role]}:"); out.append(f"s_cbranch_execz L_back{role}"); off += 4; k[role] += 1
                nxt = (off // step + 1) * step
            out.append(l); off += s
        if all(k[r] <= npads[r] for r in roles) and sum(npads.values()) - sum(k.values()) <= 1: break
        npads = dict(k) if _ < 3 else {r: max(k[r], npads[r]) for r in roles}
    assert all(k[r] <= npads[r] for r in roles) and max(npads.values()) <= 64, (k, npads)
    for r in roles:
        i = out.index(f"L_back{r}:")
        out[i:i] = [f"L_pad{r}{j}:" for j in range(k[r], npads[r])]
    sys.stderr.write(f"code bytes {off}, pads {npads}\n")
    return [l for l in out if not l.startswith(";")]

if __name__ == "__main__":
    import chk, json
    kw = json.loads(sys.argv[2]) if len(sys.argv) > 2 else {}
    s = gen(**kw)
    open(sys.argv[1], "w").write(s)
    print(chk.check(s))
```

```python
import sys, struct
sys.path.insert(0, "work")
from asmlib import *
NAME = "parallel_sum__compressed_kv_cla__dense_activation_silu__decode"
def f2h(x): return hex(struct.unpack("<I", struct.pack("<f", x))[0])
def ar(a, n=1): return f"a{a}" if n == 1 else f"a[{a}:{a+n-1}]"

WS_EPOCH = 0; WS_ID = 0x1000; WS_GO = 0x8000; WS_S1 = 0x40000; S1_ALT = 0x20000; WS_S2 = 0x80000; WS_MA = 0xC0000
WS_S3B = 0x100000; WS_S5 = 0x200000; WS_S3A = 0x400000; WS_TS = 0x900000; WS_SIZE = 0xA00000
RSZ = 39296; O_W1 = 0; O_W2 = 11520; O_UV = 21888; O_WO = 30080; O_WQ = O_WO
L_XN = 157184; L_HB = 159488; L_VB = 161024
L_QA = 131072; L_PB = 131072; L_MX = 131072 + 8192; L_FB = 131072 + 12288
LDS_BYTES = 163840

DEF = dict(ts=0, stop=99, pads=1, padstep=512, dbg=0, nalt=12, cs=33280, aw0=32, qa_at=4, go=0, go_at=16, vearly=1, wb=1, order="1,2,uv,o", hw=63, hbar=3, wukat=0, nt="c,q,k,1,2,v,o", idw=0, gow=0, idlate=1)

def gen(**kw):
    cfg = dict(DEF); cfg.update(kw)
    TS = cfg["ts"]; STOP = cfg["stop"]; CS = cfg["cs"]
    a = Asm()
    cur = [a]
    def e(s): cur[0](s)
    NT = {k: (" nt" if k in cfg["nt"].split(",") else "") for k in "c,q,k,1,2,v,o,x".split(",")}
    sX, sI, sH, sKQ, sTAG, sSPIN, sT0, sT1, sT2, sT3, sT4, sT5, sT6, sT7, sT8, sT9 = range(52, 68)
    sSP, sB = sH, sKQ
    sM0, sM1 = 48, 50
    sHI, sC0, sC1 = 100, 101, 22
    sWV = 3
    WS = 40
    def ts(i):
        if TS: e(f"s_memrealtime s[{68+2*i}:{69+2*i}]")
    def srd(d, p, size, add=None):
        if add is None: e(f"s_mov_b32 s{d}, s{p}\ns_mov_b32 s{d+1}, s{p+1}")
        else: e(f"s_add_u32 s{d}, s{p}, s{add}\ns_addc_u32 s{d+1}, s{p+1}, 0")
        e(f"s_mov_b32 s{d+2}, {hex(size)}\ns_mov_b32 s{d+3}, 0x20000")
    def setexec(m):
        lo = m & 0xffffffff; hi = m >> 32
        if m == (1 << 64) - 1: e("s_mov_b64 exec, -1")
        elif hi == 0: e(f"s_mov_b64 exec, {hex(lo)}" if lo < 0x80000000 else f"s_mov_b32 exec_lo, {hex(lo)}\ns_mov_b32 exec_hi, 0")
        elif hi == lo: e(f"s_mov_b32 exec_lo, {hex(lo)}\ns_mov_b32 exec_hi, exec_lo")
        else: e(f"s_mov_b32 exec_lo, {hex(lo)}\ns_mov_b32 exec_hi, {hex(hi)}")
    def setmask(s, m):
        lo = m & 0xffffffff; hi = m >> 32
        e(f"s_mov_b32 s{s}, {hex(lo)}")
        e(f"s_mov_b32 s{s+1}, s{s}" if hi == lo else f"s_mov_b32 s{s+1}, {hex(hi)}")
    rep16 = lambda m: m * 0x0001000100010001
    fails = []
    nopad_on = lambda: e("; NOPAD_ON")
    nopad_off = lambda: e("; NOPAD_OFF")
    def masked(m, txt):
        nopad_on(); setexec(m); e(txt); e("s_mov_b64 exec, -1"); nopad_off()
    v0, vG, vN, vL16, vTAG = 0, 1, 2, 3, 4
    def dpp(op, d, s0, s1, ctl, bank="0xf"): e(f"{op}_dpp v{d}, v{s0}, v{s1} {ctl} row_mask:0xf bank_mask:{bank}")
    def movdpp(d, s, ctl, bank="0xf"): e(f"v_mov_b32_dpp v{d}, v{s} {ctl} row_mask:0xf bank_mask:{bank}")
    QP1 = "quad_perm:[1,0,3,2]"; QP2 = "quad_perm:[2,3,0,1]"
    def R(x, n): return x if isinstance(x, str) else vr(x, n)
    def mfma32(d, A, B, C=None): e(f"v_mfma_f32_16x16x32_bf16 {vr(d,4)}, {R(A,4)}, {R(B,4)}, {vr(C,4) if C is not None else 0}")
    def mfma16(d, A, B, C=None): e(f"v_mfma_f32_16x16x16_bf16 {vr(d,4)}, {R(A,2)}, {R(B,2)}, {vr(C,4) if C is not None else 0}")
    def cvtpk(d, x, y): e(f"v_cvt_pk_bf16_f32 v{d}, v{x}, v{y}")
    def swap16(v, t, op): e(f"v_mov_b32 v{t}, v{v}\nv_permlane16_swap_b32 v{t}, v{v}\n{op} v{v}, v{v}, v{t}")
    def swap32(v, t, op): e(f"v_mov_b32 v{t}, v{v}\nv_permlane32_swap_b32 v{t}, v{v}\n{op} v{v}, v{v}, v{t}")
    def mktag():
        e(f"s_mul_i32 s{sTAG}, s{sTAG}, 1664525\ns_add_u32 s{sTAG}, s{sTAG}, 0x3c6ef35f\nv_mov_b32 v{vTAG}, s{sTAG}")

    cold = [None]
    MASKS = [4, 6, 8, 10, 12, 14, 16, 18, 20]
    def gather(items, code, post=None, extra=0, alt=None):
        lc = a.lab("L_gc"); lr = a.lab("L_gr"); n = len(items)
        e(f"{lc}:")
        for i, (ld, r) in enumerate(items):
            m = MASKS[i]
            e(f"s_waitcnt vmcnt({n-1-i+extra})")
            e(f"v_cmp_ne_u32 s[{m}:{m+1}], s{sTAG}, v{r}")
            if post: post(i)
            if i == 1: e(f"s_or_b64 s[{sM1}:{sM1+1}], s[{MASKS[0]}:{MASKS[0]+1}], s[{m}:{m+1}]")
            elif i > 1: e(f"s_or_b64 s[{sM1}:{sM1+1}], s[{sM1}:{sM1+1}], s[{m}:{m+1}]")
        al = sM1 if n > 1 else MASKS[0]
        e(f"s_cmp_lg_u64 s[{al}:{al+1}], 0\ns_cbranch_scc1 {lr}")
        c = cold[0]
        c(f"{lr}:")
        if cfg["dbg"]:
            l = f"L_fail{code}"; fails.append(code)
        else: l = "L_end"
        c(f"s_sub_u32 s{sSPIN}, s{sSPIN}, 1\ns_cbranch_scc1 {l}")
        if alt:
            regs_, bit = alt
            c(f"s_add_u32 s{sC1}, s{sC1}, 1\ns_cmp_gt_u32 s{sC1}, {cfg['nalt']}\ns_cselect_b32 s{sC0}, {hex(bit)}, 0")
            for r in regs_: c(f"s_xor_b32 s{r}, s{r}, s{sC0}")
        c("; NOPAD_ON")
        for i, (ld, r) in enumerate(items):
            m = MASKS[i]; ls = a.lab("L_gs")
            if n > 1: c(f"s_mov_b64 exec, s[{m}:{m+1}]\ns_cbranch_execz {ls}")
            else: c(f"s_mov_b64 exec, s[{m}:{m+1}]")
            c(ld("sc1"))
            if n > 1: c(f"{ls}:")
        c("s_mov_b64 exec, -1")
        c("; NOPAD_OFF")
        c(f"s_waitcnt vmcnt(0)\ns_branch {lc}")
    def lane_tr(vr_, vcq):
        e(f"v_bfe_u32 v{vr_}, v0, 2, 2\nv_and_b32 v{vcq}, 3, v0")

    ts(0)
    e("s_cmp_ge_u32 s2, 256\ns_cbranch_scc1 L_end")
    e("s_load_dwordx16 s[4:19], s[0:1], 0\ns_load_dwordx8 s[20:27], s[0:1], 64")
    e(f"v_lshrrev_b32 v1, 6, v0\nv_and_b32 v0, 63, v0\nv_readfirstlane_b32 s3, v1")
    e(f"s_and_b32 s{sX}, s2, 7\ns_bfe_u32 s{sI}, s2, 0x40003\ns_mov_b32 s{sSPIN}, 0x40000\ns_mov_b32 s{sHI}, 0xffff0000")
    e(f"v_lshlrev_b32 v{vL16}, 4, v0\nv_lshrrev_b32 v{vG}, 4, v0\nv_and_b32 v{vN}, 15, v0")
    e("s_cmp_ge_u32 s2, 128\ns_cbranch_scc1 L_attn")

    cold[0] = Asm()
    sFS = sT9; sR = sT8
    e(f"s_lshr_b32 s{sH}, s{sI}, 2\ns_lshl2_add_u32 s{sH}, s{sX}, s{sH}\ns_and_b32 s{sKQ}, s{sI}, 3\ns_lshl4_add_u32 s{sFS}, s{sX}, s{sI}\ns_mul_i32 s{sR}, s3, {RSZ}")
    vXO, vW64, vWK = 5, 6, 7
    e(f"v_lshrrev_b32 v12, 5, v0\nv_and_b32 v13, 31, v0\nv_mul_u32_u24 v12, 0x480, v12\nv_mad_u32_u24 v{vXO}, v13, 36, v12")
    e(f"v_lshrrev_b32 v12, 2, v0\nv_lshlrev_b32 v{vW64}, 13, v12\nv_lshrrev_b32 v12, 4, v0\nv_and_b32 v12, 2, v12\nv_and_b32 v13, 3, v0\nv_xor_b32 v12, v12, v13\nv_lshl_add_u32 v{vW64}, v12, 4, v{vW64}")
    e(f"v_lshlrev_b32 v{vWK}, 13, v{vN}\nv_lshl_add_u32 v{vWK}, v{vG}, 4, v{vWK}")
    e(f"s_mul_i32 s{sT0}, s{sKQ}, {144*8192}\ns_lshl_b32 s{sT1}, s{sH}, 8\ns_add_u32 s{sT0}, s{sT0}, s{sT1}\ns_lshl_b32 s{sT2}, s3, 6\ns_add_u32 s{sT0}, s{sT0}, s{sT2}")
    e(f"s_lshl2_add_u32 s{sT2}, s{sKQ}, s3\ns_lshl_b32 s{sT2}, s{sT2}, 18\ns_add_u32 s{sT6}, s{sT1}, s{sT2}\ns_add_u32 s{sT7}, s{sT6}, {16*8192}")
    e(f"s_add_u32 s{sT3}, s{sR}, {O_WQ}")
    e("s_waitcnt lgkmcnt(0)")
    ts(1)
    e(f"s_load_dword s{sTAG}, s[26:27], 0")
    srd(28, 4, 2304)
    XR = 32
    e(f"buffer_load_dwordx4 {vr(XR,4)}, v{vXO}, s[28:31], 0 offen\nbuffer_load_dwordx4 {vr(XR+4,4)}, v{vXO}, s[28:31], 0 offen offset:16\nbuffer_load_dword v{XR+8}, v{vXO}, s[28:31], 0 offen offset:32")
    srd(32, 8, 4718592); srd(36, 10, 4194304)
    if cfg["hbar"] & 1: e("s_barrier")
    for it in range(9):
        e(f"s_mov_b32 m0, s{sT3}" if it == 0 else f"s_add_u32 m0, m0, 0x400\ns_add_u32 s{sT0}, s{sT0}, {16*8192}")
        e(f"buffer_load_dwordx4 v{vW64}, s[32:35], s{sT0} offen{NT['q']} lds")
    WUKR = 224
    def wuk():
        for T in range(2):
            for t in range(4): e(f"buffer_load_dwordx4 {vr(WUKR+16*T+4*t,4)}, v{vWK}, s[36:39], s{sT6+T} offen offset:{64*t}{NT['k']}")
    if cfg["hbar"] & 2: e("s_barrier")
    if cfg["wukat"] == 0: wuk()
    srd(WS, 26, WS_SIZE)
    srd(28, 18, 5308416); srd(32, 20, 5308416); srd(44, 14, 4718592)
    e(f"s_mov_b32 s98, s12\ns_mov_b32 s99, s13")
    e("; WALK h")
    vTA0, vTA1, vTB0, vTB1, vXB = 8, 9, 10, 11, 12
    lane_tr(13, 14)
    e(f"v_lshlrev_b32 v14, 3, v14\nv_lshl_add_u32 v13, v13, 6, v14\nv_add_u32 v13, s{sR}, v13")
    e(f"v_lshl_add_u32 v{vTA0}, v{vG}, 9, v13\nv_and_b32 v14, 1, v{vG}\nv_lshl_add_u32 v{vTA0}, v14, 5, v{vTA0}\nv_xor_b32 v{vTA1}, 32, v{vTA0}")
    e(f"v_lshl_add_u32 v{vTB0}, v{vG}, 8, v13\nv_lshrrev_b32 v14, 1, v{vG}\nv_lshl_add_u32 v{vTB0}, v14, 5, v{vTB0}\nv_xor_b32 v{vTB1}, 32, v{vTB0}")
    e(f"v_and_b32 v14, 1, v{vN}\nv_mul_u32_u24 v14, 0x480, v14\nv_add_u32 v14, {L_XN}, v14\nv_lshl_add_u32 v{vXB}, v{vG}, 4, v14\nv_lshl_add_u32 v15, v{vG}, 3, v14")
    e(f"s_mul_i32 s{sT0}, s{sKQ}, 288\nv_add_u32 v13, s{sT0}, v{vXB}\nv_add_u32 v14, s{sT0}, v15")
    e(f"s_mul_i32 s{sT0}, s3, 288\nv_add_u32 v{vXB}, s{sT0}, v{vXB}\nv_add_u32 v15, s{sT0}, v15")
    e(f"v_add_u32 v{vXO}, {L_XN}, v{vXO}")
    VW1 = 16; VW2 = 21
    XF = 42
    e(f"s_waitcnt vmcnt({17 if cfg['wukat'] == 0 else 9})")
    ts(2)
    if cfg["wukat"] == 1: wuk()
    for k in range(9): e(f"v_lshlrev_b32 v{XF+2*k}, 16, v{XR+k}\nv_and_b32 v{XF+2*k+1}, s{sHI}, v{XR+k}")
    e(f"v_pk_add_f32 v[60:61], {vr(XF,2)}, {vr(XF+2,2)}")
    for k in range(2, 9): e(f"v_pk_add_f32 v[60:61], v[60:61], {vr(XF+2*k,2)}")
    e("v_add_f32 v60, v60, v61")
    def reduce32(v, t):
        for c in (QP1, QP2, "row_half_mirror", "row_mirror"): dpp("v_add_f32", v, v, v, c)
        swap16(v, t, "v_add_f32")
    def bfr(v): e(f"v_cvt_pk_bf16_f32 v{v}, v{v}, v{v}\nv_and_b32 v{v}, s{sHI}, v{v}")
    reduce32(60, 61)
    e(f"v_mul_f32 v60, {f2h(1/576)}, v60")
    for k in range(9):
        e(f"v_pk_add_f32 v[30:31], {vr(XF+2*k,2)}, v[60:61] op_sel_hi:[1,0] neg_lo:[0,1] neg_hi:[0,1]")
        e("v_pk_mul_f32 v[62:63], v[30:31], v[30:31]" if k == 0 else "v_pk_fma_f32 v[62:63], v[30:31], v[30:31], v[62:63]")
    e("v_add_f32 v62, v62, v63")
    reduce32(62, 63)
    e(f"v_mul_f32 v62, {f2h(1/576)}, v62"); bfr(62)
    e("v_add_f32 v62, 0x3727c5ac, v62"); bfr(62)
    e("v_sqrt_f32 v62, v62"); bfr(60); bfr(62)
    e("v_rcp_f32 v62, v62")
    for k in range(9):
        e(f"v_pk_add_f32 {vr(XF+2*k,2)}, {vr(XF+2*k,2)}, v[60:61] op_sel_hi:[1,0] neg_lo:[0,1] neg_hi:[0,1]")
        cvtpk(XR+k, XF+2*k, XF+2*k+1)
    for k in range(9): e(f"v_lshlrev_b32 v{XF+2*k}, 16, v{XR+k}\nv_and_b32 v{XF+2*k+1}, s{sHI}, v{XR+k}")
    for k in range(9):
        e(f"v_pk_mul_f32 {vr(XF+2*k,2)}, {vr(XF+2*k,2)}, v[62:63] op_sel_hi:[1,0]")
        cvtpk(XR+k, XF+2*k, XF+2*k+1)
        if k & 1: e(f"ds_write2_b32 v{vXO}, v{XR+k-1}, v{XR+k} offset0:{k-1} offset1:{k}")
    e(f"ds_write_b32 v{vXO}, v{XR+8} offset:32")
    XB = 128
    for st in range(4): e(f"ds_read_b128 {vr(XB+4*st,4)}, v13 offset:{64*st}")
    e(f"ds_read_b64 {vr(XB+16,2)}, v14 offset:256")
    e(f"v_and_b32 v30, 1, v{vN}\nv_lshlrev_b32 v13, 7, v30\nv_bfe_u32 v30, v{vN}, 1, 1\nv_lshl_add_u32 v30, v30, 2, v{vG}\nv_lshl_add_u32 v13, v30, 4, v13")
    e(f"s_lshl_b32 s{sT1}, s{sH}, 12\ns_add_u32 s{sT1}, s{sT1}, {WS_S1}\ns_lshl2_add_u32 s{sT0}, s3, s{sKQ}\ns_lshl_b32 s{sT0}, s{sT0}, 8\ns_add_u32 s{sT0}, s{sT0}, s{sT1}")
    e(f"v_and_b32 v30, 3, v{vN}\nv_lshlrev_b32 v14, 8, v30\nv_bfe_u32 v30, v{vN}, 2, 1\nv_lshl_add_u32 v14, v30, 7, v14\nv_lshl_add_u32 v14, v{vG}, 5, v14\nv_lshrrev_b32 v30, 3, v{vN}\nv_lshl_add_u32 v14, v30, 4, v14")
    setmask(sM0, rep16(0xCCCC))
    e(f"s_waitcnt vmcnt({8 if cfg['wukat'] < 2 else 0})")
    ts(3)
    if cfg["wukat"] == 2: wuk()
    QA_ = 148; ACC = 48
    for st in range(4):
        for T in range(2):
            for hf in range(2): e(f"ds_read_b64_tr_b16 {vr(QA_+8*st+4*T+2*hf,2)}, v{vTA0+T} offset:{O_WQ+st*2048+hf*256}")
    for T in range(2): e(f"ds_read_b64_tr_b16 {vr(QA_+32+2*T,2)}, v{vTB0+T} offset:{O_WQ+8192}")
    for st in range(4):
        e(f"s_waitcnt lgkmcnt({14-4*st})")
        for T in range(2): mfma32(ACC+4*T, QA_+8*st+4*T, XB+4*st, ACC+4*T if st else None)
    e("s_waitcnt lgkmcnt(0)")
    for T in range(2): mfma16(ACC+4*T, QA_+32+2*T, XB+16, ACC+4*T)
    mktag()
    e(f"v_mov_b32 v58, v{vTAG}\nv_mov_b32 v59, v{vTAG}")
    cvtpk(30, ACC, ACC+1); cvtpk(31, ACC+2, ACC+3); cvtpk(56, ACC+4, ACC+5); cvtpk(57, ACC+6, ACC+7)
    e(f"v_cndmask_b32 v56, v30, v56, s[{sM0}:{sM0+1}]\nv_cndmask_b32 v57, v31, v57, s[{sM0}:{sM0+1}]")
    masked(rep16(0xF), f"buffer_store_dwordx4 v[56:59], v13, s[40:43], s{sT0} offen\ns_xor_b32 s{sT0}, s{sT0}, {hex(S1_ALT)}\nbuffer_store_dwordx4 v[56:59], v13, s[40:43], s{sT0} offen sc1")
    ts(4)
    if STOP <= 1: e("s_branch L_done")
    G = 32
    it1 = [((lambda fl, t=t: f"buffer_load_dwordx4 {vr(G+4*t,4)}, v14, s[40:43], s{sT1} offen offset:{1024*t} {fl}"), G+4*t+2) for t in range(4)]
    for x in it1: e(x[0]("sc1"))
    e(f"v_bfe_u32 v30, v{vN}, 2, 1\nv_lshlrev_b32 v13, 16, v30\nv_and_b32 v30, 1, v{vN}\nv_lshl_add_u32 v30, v30, 2, v{vG}\nv_lshl_add_u32 v13, v30, 4, v13")
    e(f"s_lshl_b32 s{sT0}, s{sH}, 11\ns_lshl2_add_u32 s{sT2}, s{sKQ}, s3\ns_lshl_b32 s{sT2}, s{sT2}, 7\ns_add_u32 s{sT0}, s{sT0}, s{sT2}\ns_add_u32 s{sT0}, s{sT0}, {WS_S2}")
    for j in range(5):
        e(f"v_add_u32 v30, {64*j}, v0\nv_mul_u32_u24 v31, 0xcccd, v30\nv_lshrrev_b32 v31, 18, v31\nv_mul_u32_u24 v{VW1+j}, 5, v31\nv_sub_u32 v30, v30, v{VW1+j}\nv_mul_u32_u24 v31, 0x2400, v31\nv_lshl_add_u32 v{VW1+j}, v30, 4, v31")
    for j in range(9):
        e(f"v_add_u32 v30, {hex(64*j)}, v0\nv_mul_u32_u24 v31, 0xe39, v30\nv_lshrrev_b32 v31, 16, v31\nv_mul_u32_u24 v{VW2+j}, 18, v31\nv_sub_u32 v30, v30, v{VW2+j}\nv_mul_u32_u24 v31, 0x480, v31\nv_lshl_add_u32 v{VW2+j}, v30, 4, v31")
    setmask(sM0, rep16(0xAAAA))
    e(f"s_mov_b32 s{sC1}, 0\ns_mov_b32 s{sT2}, {f2h(128**-0.5*1.4426950408889634)}")
    gather(it1, 1, alt=([sT1], S1_ALT))
    ts(5)
    def merge_u(G):
        for t in range(4):
            movdpp(G+4*t+2, G+4*t, "row_ror:8"); movdpp(G+4*t+3, G+4*t+1, "row_ror:8")
    merge_u(G)
    for t in range(4):
        for T in range(2): mfma32(ACC+4*T, WUKR+16*T+4*t, G+4*t, ACC+4*T if t else None)
    def quadsel(D, pre=None):
        mk = f"s[{sM0}:{sM0+1}]"
        if pre: pre()
        for r in range(4): e(f"v_cndmask_b32 v{D+r}, v{ACC+r}, v{ACC+4+r}, {mk}\nv_cndmask_b32 v{ACC+r}, v{ACC+4+r}, v{ACC+r}, {mk}")
        for r in range(4): dpp("v_add_f32", D+r, ACC+r, D+r, QP1)
        for r in range(4): dpp("v_add_f32", D+r, D+r, D+r, QP2)
    quadsel(60)
    for r in range(4): e(f"v_mul_f32 v{60+r}, s{sT2}, v{60+r}")
    cvtpk(56, 60, 61); cvtpk(57, 62, 63)
    masked(rep16(0x33), f"buffer_store_dwordx4 v[56:59], v13, s[40:43], s{sT0} offen sc1")
    ts(6)
    if STOP <= 2: e("s_branch L_done")
    if cfg["go"]:
        e(f"s_lshl_b32 s{sT0}, s{sFS}, 7\ns_add_u32 s{sT0}, s{sT0}, {WS_GO}")
        itg = [((lambda fl: f"buffer_load_dwordx4 v[32:35], off, s[40:43], s{sT0} {fl}"), 34)]
        e(itg[0][0]("sc1")); gather(itg, 2)
    ts(7)
    srd(36, 98, 4194304)
    ops = {}
    o = []
    for it in range(12):
        pre = f"s_add_u32 m0, s{sR}, {O_W1}\ns_mul_i32 s{sT0}, s3, {144*9216}\ns_mul_i32 s{sT1}, s{sFS}, 72\ns_andn2_b32 s{sT1}, s{sT1}, 15\ns_add_u32 s{sT0}, s{sT0}, s{sT1}\n" if it == 0 else "s_add_u32 m0, m0, 0x400\n"
        if it in (5, 10): pre += f"s_add_u32 s{sT0}, s{sT0}, {64*9216}\n"
        ld = f"buffer_load_dwordx4 v{VW1+it%5}, s[28:31], s{sT0} offen{NT['1']} lds"
        if it == 11: ld = "; NOPAD_ON\ns_mov_b64 exec, 0xffff\n" + ld + "\ns_mov_b64 exec, -1\n; NOPAD_OFF"
        o.append(pre + ld)
    ops["1"] = o; o = []
    for it in range(11):
        pre = f"s_add_u32 m0, s{sR}, {O_W2}\ns_mul_i32 s{sT0}, s{sFS}, {36*1152}\ns_mul_i32 s{sT1}, s3, 288\ns_add_u32 s{sT0}, s{sT0}, s{sT1}\n" if it == 0 else "s_add_u32 m0, m0, 0x400\n"
        if it == 9: pre += f"s_add_u32 s{sT0}, s{sT0}, {32*1152}\n"
        ld = f"buffer_load_dwordx4 v{VW2+it%9}, s[32:35], s{sT0} offen{NT['2']} lds"
        if it == 10: ld = "; NOPAD_ON\ns_mov_b64 exec, 0xff\n" + ld + "\ns_mov_b64 exec, -1\n; NOPAD_OFF"
        o.append(pre + ld)
    ops["2"] = o; o = []
    for it in range(8):
        pre = f"s_add_u32 m0, s{sR}, {O_UV}\ns_lshl_b32 s{sT0}, s3, 20\ns_lshl2_add_u32 s{sT1}, s{sH}, s{sKQ}\ns_lshl_b32 s{sT1}, s{sT1}, 6\ns_add_u32 s{sT0}, s{sT0}, s{sT1}\n" if it == 0 else f"s_add_u32 m0, m0, 0x400\ns_add_u32 s{sT0}, s{sT0}, {16*8192}\n"
        o.append(pre + f"buffer_load_dwordx4 v{vW64}, s[36:39], s{sT0} offen{NT['v']} lds")
    ops["uv"] = o; o = []
    for it in range(9):
        pre = f"s_add_u32 m0, s{sR}, {O_WO}\ns_mul_i32 s{sT0}, s{sFS}, {32*1152}\ns_mul_i32 s{sT1}, s3, 288\ns_add_u32 s{sT0}, s{sT0}, s{sT1}\n" if it == 0 else "s_add_u32 m0, m0, 0x400\n"
        o.append(pre + f"buffer_load_dwordx4 v{VW2+it}, s[44:47], s{sT0} offen{NT['o']} lds")
    ops["o"] = o
    order = cfg["order"].split(",")
    after = {}; tot = sum(len(ops[k]) for k in order); c = 0
    for k in order:
        for x in ops[k]: e(x)
        c += len(ops[k]); after[k] = tot - c
    vF0, vF2, vFB0, vFB2, vW, vW2, vHW, vHR = 16, 17, 18, 19, 20, 21, 22, 23
    lane_tr(30, 31)
    e(f"s_and_b32 s{sT0}, s{sFS}, 1\ns_lshl3_add_u32 s{sT0}, s{sT0}, s{sR}")
    e(f"v_lshl_add_u32 v24, v{vG}, 3, v30\nv_mul_u32_u24 v24, 80, v24\nv_add_u32 v{vF2}, s{sT0}, v24\nv_lshl_add_u32 v{vF0}, v31, 3, v{vF2}")
    e(f"v_lshl_add_u32 v24, v{vG}, 2, v30\nv_mul_u32_u24 v25, 80, v24\nv_add_u32 v{vFB2}, s{sT0}, v25\nv_lshl_add_u32 v{vFB0}, v31, 3, v{vFB2}")
    e(f"v_mul_u32_u24 v24, 0x120, v24\nv_lshl_add_u32 v24, v31, 3, v24\nv_add_u32 v{vW}, s{sR}, v24\nv_mul_u32_u24 v24, 0x120, v30\nv_lshl_add_u32 v24, v31, 3, v24\nv_add_u32 v{vW2}, s{sR}, v24")
    e(f"v_and_b32 v24, 1, v{vN}\nv_lshlrev_b32 v24, 6, v24\nv_lshl_add_u32 v24, v{vG}, 4, v24\nv_bfe_u32 v25, v{vN}, 1, 2\nv_mul_u32_u24 v26, 0x180, v25\nv_add_u32 v{vHR}, v24, v26\nv_add_u32 v{vHR}, {L_HB}, v{vHR}")
    e(f"s_mul_i32 s{sT0}, s3, 384\ns_add_u32 s{sT0}, s{sT0}, {L_HB}\nv_add_u32 v{vHW}, s{sT0}, v24")
    vVR, vVW = 25, 24
    e(f"v_lshlrev_b32 v25, 8, v25\nv_and_b32 v26, 1, v{vN}\nv_lshl_add_u32 v25, v26, 7, v25\nv_lshl_add_u32 v25, v{vG}, 4, v25\nv_add_u32 v{vVR}, {L_VB}, v25")
    e(f"v_bfe_u32 v26, v{vN}, 2, 1\nv_lshl_add_u32 v24, v26, 7, v24\ns_lshl_b32 s{sT0}, s3, 8\ns_add_u32 s{sT0}, s{sT0}, {L_VB}\nv_add_u32 v{vVW}, s{sT0}, v24")
    e(f"v_and_b32 v26, 7, v{vN}\nv_lshlrev_b32 v28, 4, v26\nv_lshlrev_b32 v26, 9, v26\nv_lshl_add_u32 v26, v{vG}, 5, v26\nv_lshrrev_b32 v29, 3, v{vN}\nv_lshl_add_u32 v26, v29, 4, v26")
    e(f"s_lshl_b32 s{sT1}, s{sH}, 14\ns_lshl_b32 s{sT2}, s3, 12\ns_add_u32 s{sT1}, s{sT1}, s{sT2}\ns_add_u32 s{sT1}, s{sT1}, {WS_S3B}")
    e(f"v_lshl_add_u32 v27, v29, 18, v28\nv_lshl_add_u32 v27, v{vG}, 16, v27\nv_add_u32 v28, 0x80000, v28")
    e(f"s_lshl_b32 s{sT2}, s3, 14\ns_lshl_b32 s{sT3}, s{sFS}, 7\ns_add_u32 s{sT2}, s{sT2}, s{sT3}\ns_add_u32 s{sT2}, s{sT2}, {WS_S5}")
    OA = 64
    def ffn1():
        e(f"s_waitcnt vmcnt({after['1']})")
        ts(8)
        F = 128
        for st in range(5):
            b = F + 16*st
            if st < 4:
                e(f"ds_read_b128 {vr(b+12,4)}, v{vXB} offset:{64*st}")
                for T in range(3):
                    for hf in range(2): e(f"ds_read_b64_tr_b16 {vr(b+4*T+2*hf,2)}, v{vF0 if T < 2 else vF2} offset:{O_W1+st*2560+hf*320+T*32}")
            else:
                e(f"ds_read_b64 {vr(b+6,2)}, v15 offset:256")
                for T in range(3): e(f"ds_read_b64_tr_b16 {vr(b+2*T,2)}, v{vFB0 if T < 2 else vFB2} offset:{O_W1+128*80+T*32}")
        for st in range(5):
            b = F + 16*st
            e(f"s_waitcnt lgkmcnt({min(15, 7*(3-st)+4) if st < 4 else 0})")
            for T in range(3):
                if st < 4: mfma32(ACC+4*T, b+4*T, b+12, ACC+4*T if st else None)
                else: mfma16(ACC+4*T, b+2*T, b+6, ACC+4*T)
        masked(rep16(3), "\n".join(f"ds_write_b128 v{vHW}, {vr(ACC+4*T,4)} offset:{128*T}" for T in range(3)))
        e("s_waitcnt lgkmcnt(0)\ns_barrier")
        for T in range(3): e(f"ds_read_b128 {vr(ACC+4*T,4)}, v{vHR} offset:{128*T}")
        e("s_waitcnt lgkmcnt(0)")
        for c in (QP2, "row_ror:4"):
            for r in range(12): dpp("v_add_f32", ACC+r, ACC+r, ACC+r, c)
        H = 100
        for r in range(6): cvtpk(32+r, ACC+2*r, ACC+2*r+1)
        for r in range(6): e(f"v_lshlrev_b32 v{ACC+2*r}, 16, v{32+r}\nv_and_b32 v{ACC+2*r+1}, s{sHI}, v{32+r}")
        e(f"s_mov_b32 s{sC0}, 0xbfb8aa3b")
        for r in range(12): e(f"v_mul_f32 v{32+r}, s{sC0}, v{ACC+r}")
        for r in range(12): e(f"v_exp_f32 v{32+r}, v{32+r}")
        for r in range(12): e(f"v_add_f32 v{32+r}, 1.0, v{32+r}")
        for r in range(12): e(f"v_rcp_f32 v{32+r}, v{32+r}")
        for r in range(12): e(f"v_mul_f32 v{ACC+r}, v{ACC+r}, v{32+r}")
        for r in range(6): cvtpk(H+r, ACC+2*r, ACC+2*r+1)
        setmask(sM0, 0xFFFF)
        for r in (4, 5): e(f"v_cndmask_b32 v{H+r}, 0, v{H+r}, s[{sM0}:{sM0+1}]")
    def ffn2(first):
        H = 100; F = 128
        e(f"s_waitcnt vmcnt({after['2']})")
        ts(9)
        for tt in range(9):
            for T in range(2): e(f"ds_read_b64_tr_b16 {vr(F+6*tt+2*T,2)}, v{vW} offset:{O_W2+tt*32+T*4608}")
            e(f"ds_read_b64_tr_b16 {vr(F+6*tt+4,2)}, v{vW2} offset:{O_W2+32*288+tt*32}")
        for tt in range(9):
            e(f"s_waitcnt lgkmcnt({min(15, 3*(8-tt))})")
            mfma32(OA+4*tt, H, F+6*tt, None if first else OA+4*tt)
        for tt in range(9): mfma16(OA+4*tt, H+4, F+6*tt+4, OA+4*tt)
        ts(10)
    UV = 220; WOF = 184
    def attn_tail(first):
        if STOP <= 3: e("s_waitcnt vmcnt(0)\ns_branch L_done")
        e(f"s_waitcnt vmcnt({min(after['uv'], after['o'])})")
        ts(11)
        it3 = [((lambda fl, t=t: f"buffer_load_dwordx4 {vr(G+4*t,4)}, v26, s[40:43], s{sT1} offen offset:{128*t} {fl}"), G+4*t+2) for t in range(4)]
        for x in it3: e(x[0]("sc1"))
        for st in range(4):
            for T in range(2):
                for hf in range(2): e(f"ds_read_b64_tr_b16 {vr(UV+8*st+4*T+2*hf,2)}, v{vTA0+T} offset:{O_UV+st*2048+hf*256}")
        for tt in range(9):
            for T in range(2): e(f"ds_read_b64_tr_b16 {vr(WOF+4*tt+2*T,2)}, v{vW} offset:{O_WO+tt*32+T*4608}")
        setmask(sM0, rep16(0xAAAA))
        gather(it3, 3)
        ts(12)
        e(f"v_mov_b32 v60, v{G+3}")
        movdpp(61, G+3, "row_ror:8")
        merge_u(G)
        e("s_waitcnt lgkmcnt(0)")
        for t in range(4):
            for T in range(2): mfma32(ACC+4*T, UV+8*t+4*T, G+4*t, ACC+4*T if t else None)
        dpp("v_max_f32", 62, 60, 60, QP1); dpp("v_max_f32", 62, 62, 62, QP2)
        e("v_sub_f32 v60, v60, v62\nv_exp_f32 v60, v60\nv_mul_f32 v61, v60, v61")
        dpp("v_add_f32", 61, 61, 61, QP1); dpp("v_add_f32", 61, 61, 61, QP2)
        e("v_rcp_f32 v61, v61\nv_mul_f32 v60, v60, v61")
        def pre():
            for r in range(8): e(f"v_mul_f32 v{ACC+r}, v{ACC+r}, v60")
        quadsel(56, pre)
        masked(rep16(0x33), f"ds_write_b128 v{vVW}, v[56:59]")
        e("s_waitcnt lgkmcnt(0)\ns_barrier")
        for T in range(2): e(f"ds_read_b128 {vr(ACC+4*T,4)}, v{vVR} offset:{64*T}")
        e("s_waitcnt lgkmcnt(0)")
        for c in (QP2, "row_ror:4"):
            for r in range(8): dpp("v_add_f32", ACC+r, ACC+r, ACC+r, c)
        for r in range(4): cvtpk(56+r, ACC+2*r, ACC+2*r+1)
        ts(13)
        for tt in range(9): mfma32(OA+4*tt, 56, WOF+4*tt, None if first else OA+4*tt)
    seq = ["1", "2", "t"] if order.index("2") < max(order.index("uv"), order.index("o")) else ["1", "t", "2"]
    if order.index("1") > max(order.index("uv"), order.index("o")): seq = ["t", "1", "2"]
    seq = cfg.get("seq", ",".join(seq)).split(",")
    first = True
    for k in seq:
        if k == "1": ffn1()
        elif k == "2": ffn2(first); first = False
        else: attn_tail(first); first = False
    e(f"v_mov_b32 v34, v{vTAG}\nv_mov_b32 v35, v{vTAG}\nv_mov_b32 v38, v{vTAG}\nv_mov_b32 v39, v{vTAG}")
    nopad_on()
    for g in range(4):
        setexec(0xFFFF << (16*g))
        cvtpk(32, OA+8*g, OA+8*g+1); cvtpk(33, OA+8*g+4, OA+8*g+5)
    e("s_mov_b64 exec, -1")
    nopad_off()
    e(f"buffer_store_dwordx4 v[32:35], v27, s[40:43], s{sT2} offen sc1")
    cvtpk(36, OA+32, OA+33)
    movdpp(37, 36, "row_ror:8")
    masked(0xFF, f"buffer_store_dwordx4 v[36:39], v28, s[40:43], s{sT2} offen sc1")
    ts(14)
    e("s_branch L_done")
    a.L += cold[0].L
    e("; WALKEND")

    cold[0] = Asm()
    e("L_attn:")
    e(f"s_lshr_b32 s{sB}, s{sX}, 2\ns_lshl4_add_u32 s{sT0}, s{sX}, s{sI}\ns_lshl_b32 s{sT0}, s{sT0}, 17\ns_lshl_b32 s{sT1}, s3, 15")
    VC = 8
    for q in range(8):
        f = ((q & 7) << 1) | ((q >> 2) & 1)
        e(f"v_xor_b32 v{VC+q}, {hex(16*f)}, v{vL16}" if f else f"v_mov_b32 v{VC+q}, v{vL16}")
    e(f"s_getreg_b32 s{sT9}, hwreg(HW_REG_XCC_ID, 0, 4)")
    e("s_waitcnt lgkmcnt(0)")
    ts(1)
    e(f"s_load_dword s{sTAG}, s[26:27], 0")
    srd(28, 6, 131072, add=sT0)
    def dma(lo, hi):
        for row in range(lo, hi):
            if row % 4 == 0: e(f"s_add_u32 m0, s{sT1}, {row*1024}")
            e(f"buffer_load_dwordx4 v{VC+(row&7)}, s[28:31], m0 offen offset:{(row&3)*1024}{NT['c']} lds")
    AW0 = cfg["aw0"]
    if not cfg.get("adelay"): dma(0, AW0)
    srd(WS, 26, WS_SIZE); srd(32, 4, 2304); srd(44, 22, 2304)
    e("; WALK a")
    e(f"v_and_b32 v5, 7, v{vN}\nv_lshlrev_b32 v5, 1, v5\nv_bfe_u32 v6, v{vN}, 2, 1\nv_or_b32 v5, v5, v6\nv_xor_b32 v5, v5, v{vG}\nv_lshlrev_b32 v5, 4, v5")
    e(f"v_lshl_add_u32 v5, v{vN}, 10, v5\nv_add_u32 v16, s{sT1}, v5\nv_xor_b32 v17, 64, v16\nv_xor_b32 v18, 0x80, v16\nv_xor_b32 v19, 0xc0, v16")
    e(f"v_xor_b32 v5, v{vG}, v{vN}\nv_lshlrev_b32 v5, 4, v5\nv_lshl_add_u32 v5, v{vN}, 10, v5\nv_add_u32 v20, {L_QA}, v5\nv_xor_b32 v21, 64, v20\nv_xor_b32 v22, 0x80, v20\nv_xor_b32 v23, 0xc0, v20")
    e(f"s_lshl_b32 s{sT2}, s3, 2\nv_lshrrev_b32 v5, 1, v0\nv_xor_b32 v5, s{sT2}, v5\nv_lshlrev_b32 v5, 4, v5\nv_and_b32 v6, 1, v0\nv_lshl_add_u32 v5, v6, 3, v5\ns_lshl_b32 s{sT2}, s3, 12\ns_add_u32 s{sT2}, s{sT2}, {L_QA}\nv_add_u32 v24, s{sT2}, v5")
    for ee in range(1, 4): e(f"v_xor_b32 v{24+ee}, {16*ee}, v24\nv_add_u32 v{24+ee}, {hex(1024*ee)}, v{24+ee}")
    VA = 96
    e(f"v_bfe_u32 v5, v0, 2, 2\nv_and_b32 v6, 1, v{vG}\nv_lshl_add_u32 v6, v6, 2, v5\nv_lshlrev_b32 v7, 1, v6\nv_lshrrev_b32 v6, 2, v6\nv_or_b32 v7, v7, v6")
    e(f"v_bfe_u32 v6, v0, 1, 1\nv_xor_b32 v7, v7, v6\nv_lshlrev_b32 v7, 4, v7\nv_and_b32 v6, 1, v0\nv_lshl_add_u32 v7, v6, 3, v7")
    e(f"v_lshl_add_u32 v5, v{vG}, 2, v5\nv_lshl_add_u32 v7, v5, 10, v7\ns_lshl_b32 s{sT2}, s3, 8\nv_add_u32 v{VA}, s{sT2}, v7")
    for ct in range(1, 8): e(f"v_xor_b32 v{VA+ct}, {hex(32*ct)}, v{VA}")
    for ct in range(8): e(f"v_add_u32 v{VA+8+ct}, 0x10000, v{VA+ct}")
    e(f"s_lshl_b32 s{sT2}, s{sB}, 16\ns_lshl_b32 s{sT3}, s3, 13\ns_add_u32 s{sT2}, s{sT2}, s{sT3}\ns_add_u32 s{sT2}, s{sT2}, {WS_S2}\ns_add_u32 s{sT3}, s{sT2}, 0x1000\ns_add_u32 s{sT4}, s{sT2}, 0x8000\ns_add_u32 s{sT5}, s{sT2}, 0x9000")
    e(f"v_lshlrev_b32 v5, 7, v{vN}\ns_lshl_b32 s{sT6}, s{sX}, 11\ns_add_u32 s{sT6}, s{sT6}, {WS_ID}")
    if cfg.get("adelay"): dma(0, AW0)
    e("s_waitcnt lgkmcnt(0)")
    mktag()
    def id_pub():
        lid = a.lab("L_noid")
        e(f"s_cmp_lg_u32 s3, {cfg['idw']}\ns_cbranch_scc1 {lid}")
        e(f"s_lshl_b32 s{sT7}, s{sI}, 7\ns_add_u32 s{sT7}, s{sT7}, s{sT6}")
        masked(0xFF, f"buffer_store_dwordx4 v[28:31], v{vL16}, s[40:43], s{sT7} offen sc1")
        e(f"{lid}:")
    e(f"v_mov_b32 v28, s{sT9}\nv_mov_b32 v29, s{sT9}\nv_mov_b32 v30, v{vTAG}\nv_mov_b32 v31, v{vTAG}")
    if not cfg["idlate"]: id_pub()
    issued = AW0
    def wait_landed(n):
        e(f"s_waitcnt vmcnt({issued-n+wl_extra[0]})")
    wl_extra = [0]
    if cfg.get("slide"):
        W, st, N = cfg["slide"]
        n = st
        while n <= N:
            wait_landed(n)
            if n == st and cfg.get("tsfirst"): ts(2)
            k = 32 if n + st > N else min(32, n + W); dma(issued, k); issued = k; n += st
    elif AW0 < 32:
        step = cfg.get("astep", 4); first_n = cfg.get("afirst", 4)
        n = first_n
        while issued < 32:
            wait_landed(n); k = min(32, issued + step); dma(issued, k); issued = k; n += step
    if cfg["idlate"]: id_pub()
    KR = 128; VR = 128
    def kread(T, t): return f"ds_read_b128 {ar(KR+64*T+4*t,4)}, v{16+(t&3)} offset:{T*16384+(t>>2)*256}"
    def vread(ct, kw, T): return f"ds_read_b64_tr_b16 {vr(VR+16*ct+4*kw+2*T,2)}, v{VA+8*(kw>>1)+ct} offset:{(kw&1)*32768+T*16384}"
    wait_landed(16)
    if not cfg.get("tsfirst"): ts(2)
    for t in range(16): e(kread(0, t))
    def go_pub():
        l = a.lab("L_nogo")
        e(f"s_cmp_lg_u32 s3, {cfg['gow']}\ns_cbranch_scc1 {l}")
        e(f"s_lshl4_add_u32 s{sT7}, s{sX}, s{sI}\ns_lshl_b32 s{sT7}, s{sT7}, 7\ns_add_u32 s{sT7}, s{sT7}, {WS_GO}")
        masked(0xFF, f"buffer_store_dwordx4 v[28:31], v{vL16}, s[40:43], s{sT7} offen sc1")
        e(f"{l}:")
    if cfg["go"] and cfg["go_at"] <= 16: go_pub()
    if cfg["vearly"]:
        e("s_barrier")
        for kw in range(4):
            for ct in range(8): e(vread(ct, kw, 0))
    if cfg["go"] and 16 < cfg["go_at"] <= 32 - cfg["qa_at"]:
        wait_landed(cfg["go_at"]); go_pub()
    if STOP <= 2:
        e("s_waitcnt vmcnt(0)\ns_branch L_done")
    GA = 32
    def qld(HT, k):
        i = 8*HT + k; ee = k >> 1; hf = k & 1
        return ((lambda fl: f"buffer_load_dwordx4 {vr(GA+4*i,4)}, v{vL16}, s[40:43], s{sT2+2*HT+(ee>>1)} offen offset:{(ee&1)*2048+hf*1024} {fl}"), GA+4*i+2)
    idit = ((lambda fl: f"buffer_load_dwordx4 v[112:115], v5, s[40:43], s{sT6} offen {fl}"), 114)
    itq = [[qld(HT, k) for k in range(8)] for HT in range(2)]
    itq[1].append(idit)
    wait_landed(32 - cfg["qa_at"])
    ts(3)
    for HT in range(2):
        for x in itq[HT]: e(x[0](""))
    wl_extra[0] = 17
    wait_landed(32)
    ts(4)
    for t in range(16): e(kread(1, t))
    if cfg["go"] and cfg["go_at"] > 32 - cfg["qa_at"]: go_pub()
    S = 32
    def qapost(HT): return lambda k: (e(f"ds_write_b64 v{24+(k>>1)}, {vr(GA+4*(8*HT+k),2)} offset:{HT*16384+(k&1)*512}") if k < 8 else None)
    def qaread(HT, t): return f"ds_read_b128 {ar(64*HT+4*t,4)}, v{20+(t&3)} offset:{HT*16384+(t>>2)*256}"
    vr1 = [vread(ct, kw, 1) for kw in range(4) for ct in range(8)]
    if not cfg["vearly"]: vr1 = [vread(ct, kw, 0) for kw in range(4) for ct in range(8)] + vr1
    gather(itq[0], 4, post=qapost(0), extra=9)
    ts(5)
    e("s_waitcnt lgkmcnt(0)\ns_barrier")
    for t in range(16): e(qaread(0, t))
    for t in range(16):
        e(f"s_waitcnt lgkmcnt({15-t})")
        for T in range(2): mfma32(S+4*T, ar(KR+64*T+4*t,4), ar(4*t,4), S+4*T if t else None)
    gather(itq[1], 5, post=qapost(1))
    ts(6)
    e(f"v_cmp_ne_u32 vcc, s{sT9}, v112\ns_mov_b64 s[{sM0}:{sM0+1}], vcc")
    sSAME = sT9
    e(f"s_cmp_eq_u64 s[{sM0}:{sM0+1}], 0\ns_cselect_b32 s{sSAME}, 1, 0")
    e("s_waitcnt lgkmcnt(0)\ns_barrier")
    for t in range(16): e(qaread(1, t))
    nv = len(vr1); per = nv // 16
    def sm_max(HT):
        s = S + 8*HT; m = 56 + HT
        o = Asm()
        o(f"v_max3_f32 v{m}, v{s}, v{s+1}, v{s+2}\nv_max3_f32 v58, v{s+3}, v{s+4}, v{s+5}\nv_max3_f32 v{m}, v{m}, v{s+6}, v{s+7}\nv_max_f32 v{m}, v{m}, v58")
        o(f"v_mov_b32 v58, v{m}\nv_permlane16_swap_b32 v58, v{m}\nv_max_f32 v{m}, v{m}, v58\nv_mov_b32 v58, v{m}\nv_permlane32_swap_b32 v58, v{m}\nv_max_f32 v{m}, v{m}, v58\nv_ceil_f32 v{m}, v{m}")
        for r in range(8): o(f"v_sub_f32 v{s+r}, v{s+r}, v{m}")
        for r in range(8): o(f"v_exp_f32 v{s+r}, v{s+r}")
        for r in range(4): o(f"v_cvt_pk_bf16_f32 v{48+4*HT+r}, v{s+2*r}, v{s+2*r+1}")
        return o.L
    sm0 = sm_max(0); k = 0
    for t in range(16):
        e(f"s_waitcnt lgkmcnt({15-t})" if t < 15 else "s_waitcnt lgkmcnt(0)")
        for T in range(2):
            mfma32(S+8+4*T, ar(KR+64*T+4*t,4), ar(64+4*t,4), S+8+4*T if t else None)
            for x in sm0[k:k+1]: e(x)
            k += 1
        if t == 15: e("s_barrier")
    for x in sm0[k:]: e(x)
    ts(7)
    e(f"s_lshl_b32 s{sT2}, s3, 11\ns_add_u32 s{sT2}, s{sT2}, {L_PB}\nv_add_u32 v5, s{sT2}, v{vL16}\nds_write_b128 v5, v[48:51]")
    e(f"s_lshl_b32 s{sT2}, s3, 2\nv_lshlrev_b32 v6, 5, v{vN}\nv_add_u32 v6, {L_MX}, v6\nv_add_u32 v7, s{sT2}, v6\nds_write_b32 v7, v56")
    for x in interleave(sm_max(1), vr1, start=0, every=1, per=(nv + 30) // 31): e(x)
    e(f"ds_write_b128 v5, v[52:55] offset:1024\nds_write_b32 v7, v57 offset:16")
    e(f"v_add_u32 v5, {L_PB}, v{vL16}")
    e(f"v_bfe_u32 v30, v{vN}, 1, 2\nv_mul_u32_u24 v30, {hex(CS)}, v30\nv_and_b32 v31, 1, v{vN}\nv_lshl_add_u32 v30, v31, 8, v30\nv_lshrrev_b32 v31, 3, v{vN}\nv_lshl_add_u32 v30, v31, 6, v30\nv_lshl_add_u32 v30, v{vG}, 4, v30\nv_add_u32 v31, {hex(4*CS)}, v30")
    e(f"s_mul_i32 s{sT5}, s{sX}, {16*CS}\ns_lshl_b32 s{sT3}, s3, 13\ns_add_u32 s{sT5}, s{sT5}, s{sT3}\ns_add_u32 s{sT5}, s{sT5}, {WS_S3A}\ns_lshl_b32 s{sT4}, s{sI}, 9\ns_add_u32 s{sT2}, s{sT5}, s{sT4}\ns_add_u32 s{sT3}, s{sT2}, {8*CS}")
    e(f"s_lshl2_add_u32 s{sT6}, s{sX}, s3\ns_lshl_b32 s{sT6}, s{sT6}, 13\ns_add_u32 s{sT6}, s{sT6}, {WS_MA}\ns_add_u32 s{sT4}, s{sT4}, s{sT6}")
    e(f"s_mov_b32 s{sC0}, 0x800080")
    e("s_waitcnt lgkmcnt(0)\ns_barrier")
    ts(8)
    PF = 96
    e("ds_read_b128 v[56:59], v6\nds_read_b128 v[60:63], v6 offset:16")
    for HT in range(2):
        for kw in range(4): e(f"ds_read_b128 {vr(PF+16*HT+4*kw,4)}, v5 offset:{kw*2048+HT*1024}")
    for r in range(4): e(f"v_mov_b32 v{24+r}, 0x3f803f80")
    e("s_waitcnt lgkmcnt(8)")
    for HT in range(2):
        m = 56 + 4*HT; M = 28 + HT
        e(f"v_max3_f32 v{M}, v{m}, v{m+1}, v{m+2}\nv_max_f32 v{M}, v{M}, v{m+3}")
        for kw in range(4): e(f"v_sub_f32 v{m+kw}, v{M}, v{m+kw}")
        for kw in range(4): e(f"v_cvt_u32_f32 v{m+kw}, v{m+kw}")
        for kw in range(4): e(f"v_min_u32 v{m+kw}, 0xff, v{m+kw}")
        for kw in range(4): e(f"v_mul_u32_u24 v{m+kw}, s{sC0}, v{m+kw}")
    def padj(HT, kw): return [f"v_pk_sub_u16 v{PF+16*HT+4*kw+r}, v{PF+16*HT+4*kw+r}, v{56+4*HT+kw} clamp" for r in range(4)]
    for kw in range(4):
        e(f"s_waitcnt lgkmcnt({7-kw})")
        for x in padj(0, kw): e(x)
    e("s_waitcnt lgkmcnt(0)")
    for kw in range(4):
        for x in padj(1, kw): e(x)
    O = 32
    def pv(fl):
        batches = [(q, HT) for q in range(2) for HT in range(2)]
        def pack(q, HT):
            A = O + 32*HT + 16*q
            o = [f"v_cvt_pk_bf16_f32 v{A+k}, v{A+2*k}, v{A+2*k+1}" for k in range(8)]
            X = A; Y = A + 4; Z = A + 8
            o += [f"v_mov_b32 v{Z+r}, v{X+r}" for r in range(4)]
            o += [f"v_mov_b32_dpp v{X+r}, v{Y+r} row_ror:8 row_mask:0xf bank_mask:0xc" for r in range(4)]
            o += [f"buffer_store_dwordx4 {vr(X,4)}, v30, s[40:43], s{sT2+HT} offen offset:{128*q} {fl}"]
            o += [f"v_mov_b32_dpp v{Y+r}, v{Z+r} row_ror:8 row_mask:0xf bank_mask:0x3" for r in range(4)]
            o += [f"buffer_store_dwordx4 {vr(Y,4)}, v31, s[40:43], s{sT2+HT} offen offset:{128*q} {fl}"]
            return o
        prev = None
        for bi in range(5):
            mf = []
            if bi < 4:
                q, HT = batches[bi]
                for kw in range(4):
                    for cc in range(4):
                        ct = 4*q + cc; acc = O + 32*HT + 4*ct
                        mf.append(f"v_mfma_f32_16x16x32_bf16 {vr(acc,4)}, {vr(VR+16*ct+4*kw,4)}, {vr(PF+16*HT+4*kw,4)}, {vr(acc,4) if kw else 0}")
            else:
                for kw in range(4):
                    for HT in range(2): mf.append(f"v_mfma_f32_16x16x32_bf16 {vr(16+4*HT,4)}, v[24:27], {vr(PF+16*HT+4*kw,4)}, {vr(16+4*HT,4) if kw else 0}")
            p = pack(*batches[bi-1]) if bi else []
            k = 0
            for i, x in enumerate(mf):
                e(x)
                if i >= 2:
                    n = 2 if bi < 4 else 4
                    for y in p[k:k+n]: e(y)
                    k += n
            for y in p[k:]: e(y)
        ts(9)
        setmask(sM0, 0x0000FFFF0000FFFF)
        e(f"v_cndmask_b32 v8, v29, v28, s[{sM0}:{sM0+1}]\nv_cndmask_b32 v9, v20, v16, s[{sM0}:{sM0+1}]\nv_mov_b32 v10, v{vTAG}\nv_mov_b32 v11, v{vTAG}")
        e("s_waitcnt vmcnt(0)")
        ts(10)
        masked(0xFFFFFFFF, f"buffer_store_dwordx4 v[8:11], v{vL16}, s[40:43], s{sT4} offen {fl}")
    e(f"s_cmp_eq_u32 s{sSAME}, 0\ns_cbranch_scc1 L_pv_far")
    pv("")
    e("L_pv_done:")
    sv = cur[0]; cur[0] = far = Asm(); e("L_pv_far:"); pv("sc1"); e("s_branch L_pv_done"); cur[0] = sv
    if STOP <= 3: e("s_branch L_done")
    e(f"v_and_b32 v5, 3, v{vN}\nv_lshl_add_u32 v5, v5, 2, v{vG}\nv_lshlrev_b32 v5, 9, v5\nv_lshrrev_b32 v6, 3, v{vN}\nv_lshl_add_u32 v5, v6, 4, v5")
    e(f"s_lshl_b32 s{sT2}, s{sI}, 5\ns_add_u32 s{sT6}, s{sT6}, s{sT2}")
    itm = [((lambda fl: f"buffer_load_dwordx4 v[32:35], v5, s[40:43], s{sT6} offen {fl}"), 34)]
    e(itm[0][0]("sc1"))
    e(f"v_and_b32 v7, 7, v{vN}\nv_lshlrev_b32 v7, 4, v7\nv_lshl_add_u32 v7, v6, 8, v7\nv_lshl_add_u32 v7, v{vG}, 9, v7")
    e(f"s_mul_i32 s{sT2}, s{sI}, {CS}\ns_add_u32 s{sT2}, s{sT2}, s{sT5}\ns_add_u32 s{sT3}, s{sT2}, 0x1000")
    MK = 112; AM = 96; PAY = 64
    e(f"v_and_b32 v8, 1, v{vN}\nv_lshlrev_b32 v8, 4, v8\nv_mov_b32 v9, 0xffff\nv_lshlrev_b32 v8, v8, v9\nv_bfe_u32 v9, v{vN}, 1, 2")
    for r in range(4): e(f"v_cmp_eq_u32 vcc, {r}, v9\nv_cndmask_b32 v{MK+r}, 0, v8, vcc")
    e(f"v_lshrrev_b32 v9, 1, v{vG}\nv_lshlrev_b32 v8, 4, v9\nv_bfe_u32 v9, v{vN}, 2, 1\nv_lshl_add_u32 v8, v9, 3, v8\nv_and_b32 v9, 1, v{vG}\nv_lshl_add_u32 v8, v9, 2, v8\nv_and_b32 v9, 3, v{vN}\nv_add_u32 v8, v8, v9\nv_lshlrev_b32 v8, 4, v8\nv_lshl_add_u32 v8, v6, 14, v8")
    e(f"s_lshl_b32 s{sT4}, s{sI}, 15\ns_lshl_b32 s{sT7}, s3, 12\ns_add_u32 s{sT4}, s{sT4}, s{sT7}\ns_lshl_b32 s{sT7}, s{sX}, 9\ns_add_u32 s{sT4}, s{sT4}, s{sT7}\ns_add_u32 s{sT4}, s{sT4}, {WS_S3B}")
    setmask(sM0, rep16(0xAAAA))
    gather(itm, 6)
    ts(11)
    for pq in range(4):
        for q in range(2): e(f"buffer_load_dwordx4 {vr(PAY+8*pq+4*q,4)}, v7, s[40:43], s{sT2+(pq>>1)} offen offset:{(pq&1)*2048+q*128} sc1")
    dpp("v_max_f32", 36, 32, 32, QP1); dpp("v_max_f32", 36, 36, 36, QP2)
    swap16(36, 37, "v_max_f32"); swap32(36, 37, "v_max_f32")
    e("v_sub_f32 v37, v32, v36\nv_exp_f32 v37, v37\nv_mul_f32 v38, v37, v33")
    cvtpk(37, 37, 37)
    for pq in range(4):
        for r in range(4): e(f"v_and_b32_dpp v{AM+4*pq+r}, v37, v{MK+r} quad_perm:[{pq},{pq},{pq},{pq}] row_mask:0xf bank_mask:0xf")
    dpp("v_add_f32", 38, 38, 38, QP1); dpp("v_add_f32", 38, 38, 38, QP2)
    swap16(38, 39, "v_add_f32"); swap32(38, 39, "v_add_f32")
    e(f"v_cndmask_b32 v51, v36, v38, s[{sM0}:{sM0+1}]\nv_mov_b32 v50, v{vTAG}")
    for pq in range(4):
        for q in range(2):
            e(f"s_waitcnt vmcnt({7-2*pq-q})")
            mfma32(40+4*q, AM+4*pq, PAY+8*pq+4*q, 40+4*q if pq else None)
    ts(12)
    cvtpk(48, 40, 41); cvtpk(49, 42, 43); cvtpk(52, 44, 45); cvtpk(53, 46, 47)
    e("v_permlane32_swap_b32 v48, v52\nv_permlane32_swap_b32 v49, v53")
    movdpp(48, 52, "quad_perm:[0,1,2,3]", "0xc"); movdpp(49, 53, "quad_perm:[0,1,2,3]", "0xc")
    e(f"buffer_store_dwordx4 v[48:51], v8, s[40:43], s{sT4} offen sc1")
    ts(13)
    if STOP <= 4: e("s_branch L_done")
    if cfg["wb"]:
        e(f"s_or_b32 s{sT2}, s{sI}, s3\ns_cmp_lg_u32 s{sT2}, 0\ns_cbranch_scc1 L_nowb\nbuffer_wbl2 sc1\ns_branch L_done\nL_nowb:")
    e(f"s_cmp_lt_u32 s{sI}, 11\ns_cbranch_scc1 L_done")
    e(f"s_sub_u32 s{sT1}, s{sI}, 11\ns_lshl3_add_u32 s{sT1}, s{sT1}, s{sX}\ns_cmp_ge_u32 s{sT1}, 36\ns_cbranch_scc1 L_done")
    e(f"s_lshl_b32 s{sT2}, s{sT1}, 14\ns_lshl_b32 s{sT3}, s3, 12\ns_add_u32 s{sT2}, s{sT2}, s{sT3}\ns_add_u32 s{sT2}, s{sT2}, {WS_S5}")
    it5 = [((lambda fl, k=k: f"buffer_load_dwordx4 {vr(64+4*k,4)}, v{vL16}, s[40:43], s{sT2} offen offset:{1024*k} {fl}"), 64+4*k+2) for k in range(4)]
    e(f"s_and_b32 s{sT3}, s{sT1}, 3\ns_mul_i32 s{sT3}, s{sT3}, 144\ns_bfe_u32 s{sT4}, s{sT1}, 0x20002\ns_lshl_b32 s{sT4}, s{sT4}, 5\ns_lshr_b32 s{sT5}, s{sT1}, 4\ns_lshl3_add_u32 s{sT4}, s{sT5}, s{sT4}")
    e(f"s_cmp_ge_u32 s{sT1}, 32\ns_cselect_b32 s{sT4}, 128, s{sT4}\ns_cselect_b32 s{sT5}, 16, 32\ns_add_u32 s{sT3}, s{sT3}, s{sT4}\ns_lshl_b32 s{sT3}, s{sT3}, 1")
    e(f"v_and_b32 v6, 7, v0\nv_lshlrev_b32 v5, 1, v6\nv_bfe_u32 v7, v0, 3, 1\nv_mul_u32_u24 v8, 0x480, v7\nv_add_u32 v5, v5, v8\nv_bfe_u32 v8, v0, 4, 1\nv_mul_u32_u24 v9, s{sT5}, v8\nv_add_u32 v5, v5, v9")
    e(f"buffer_load_ushort v31, v5, s[32:35], s{sT3} offen")
    for x in it5: e(x[0]("sc1"))
    e(f"v_lshlrev_b32 v6, 4, v6\nv_lshl_add_u32 v8, v8, 1, v7\nv_lshl_add_u32 v6, v8, 2, v6\nv_add_u32 v6, {L_FB}, v6\ns_lshl_b32 s{sT4}, s3, 7\ns_add_u32 s{sT4}, s{sT4}, {L_FB}\nv_add_u32 v7, s{sT4}, v{vL16}")
    e(f"v_and_b32 v8, 1, v{vN}\nv_lshlrev_b32 v8, 4, v8\nv_mov_b32 v9, 0x3f80\nv_lshlrev_b32 v8, v8, v9\nv_bfe_u32 v9, v{vN}, 1, 1\nv_cmp_eq_u32 vcc, 0, v9\nv_cndmask_b32 v10, 0, v8, vcc\nv_cndmask_b32 v11, v8, 0, vcc")
    gather(it5, 7, post=lambda k: mfma16(40, 10, 64+4*k, 40 if k else None))
    ts(14)
    for r in range(4): dpp("v_add_f32", 40+r, 40+r, 40+r, "row_ror:8")
    masked(0xFF, "ds_write_b128 v7, v[40:43]")
    e("s_waitcnt lgkmcnt(0)\ns_barrier\ns_cmp_lg_u32 s3, 0\ns_cbranch_scc1 L_done")
    for w in range(4): e(f"ds_read_b32 v{40+w}, v6 offset:{128*w}")
    e("v_lshlrev_b32 v31, 16, v31\ns_waitcnt lgkmcnt(0)\nv_add_f32 v40, v40, v41\nv_add_f32 v42, v42, v43\nv_add_f32 v40, v40, v42\nv_add_f32 v40, v40, v31")
    cvtpk(40, 40, 40)
    nopad_on()
    setexec(0xFFFFFFFF)
    e(f"buffer_store_short v40, v5, s[44:47], s{sT3} offen")
    e(f"s_cmp_lg_u32 s{sT1}, 0\ns_cbranch_scc1 L_done")
    e("s_mov_b64 exec, 1")
    e(f"buffer_store_dword v{vTAG}, off, s[40:43], 0 sc1")
    nopad_off()
    e("s_branch L_done")
    a.L += cold[0].L
    e("; WALKEND")
    a.L += far.L
    e("L_done:")
    if cfg.get("amp"):
        wg, wv, i0, i1, K = cfg["amp"]
        e(f"s_cmp_lg_u32 s2, {wg}\ns_cbranch_scc1 L_amp_no\ns_cmp_lg_u32 s3, {wv}\ns_cbranch_scc1 L_amp_no")
        e(f"s_waitcnt lgkmcnt(0)\ns_memrealtime s[6:7]\ns_waitcnt lgkmcnt(0)")
        if i1 == 15: e(f"s_sub_u32 s4, s6, s{68+2*i0}")
        else: e(f"s_sub_u32 s4, s{68+2*i1}, s{68+2*i0}")
        e(f"s_mul_i32 s4, s4, {K}\ns_min_u32 s4, s4, 100000\nL_amp:\ns_memrealtime s[8:9]\ns_waitcnt lgkmcnt(0)\ns_sub_u32 s5, s8, s6\ns_cmp_lt_u32 s5, s4\ns_cbranch_scc1 L_amp\nL_amp_no:")
    if TS == 1:
        e("s_mov_b64 exec, -1\ns_waitcnt lgkmcnt(0)")
        e(f"s_lshl2_add_u32 s4, s2, s3\ns_lshl_b32 s4, s4, 6\ns_add_u32 s4, s4, {WS_TS}\ns_memrealtime s[6:7]\nv_lshlrev_b32 v1, 2, v0\nv_mov_b32 v2, 0")
        for i in range(15): e(f"v_writelane_b32 v2, s{68+2*i}, {i}")
        e("s_waitcnt lgkmcnt(0)\nv_writelane_b32 v2, s6, 15")
        e(f"s_mov_b64 exec, 0xffff\nbuffer_store_dword v2, v1, s[40:43], s4 offen")
    e("L_end:\ns_endpgm")
    for c in sorted(set(fails)):
        e(f"L_fail{c}:\ns_movk_i32 s4, {c}\ns_branch L_fail")
    if fails:
        e("L_fail:\ns_mov_b64 exec, 1\ns_mov_b32 s28, s24\ns_mov_b32 s29, s25\ns_mov_b32 s30, 256\ns_mov_b32 s31, 0x20000\ns_lshl_b32 s5, s4, 2\nv_mov_b32 v1, 1\nv_mov_b32 v2, s5\nbuffer_atomic_add v1, v2, s[28:31], 0 offen\ns_endpgm")

    lines = a.L
    head = '.amdgcn_target "amdgcn-amd-amdhsa--gfx950"\n.text\n'
    lines = finish(lines, cfg, head)
    hdr = open("cdna_kernels/" + NAME + ".s.ref").read().split("; @launch")[0]
    out = hdr + f"; @launch grid=(256,1,1) block=(256,1,1) lds={LDS_BYTES}\n" + head
    out += f".globl {NAME}_kernel\n.p2align 12\n.type {NAME}_kernel,@function\n{NAME}_kernel:\n" + "\n".join(lines) + "\n"
    out += f""".section .rodata,"a"
.p2align 6
.amdhsa_kernel {NAME}_kernel
  .amdhsa_next_free_vgpr 512
  .amdhsa_next_free_sgpr 102
  .amdhsa_accum_offset 256
  .amdhsa_group_segment_fixed_size 0
  .amdhsa_kernarg_size 96
  .amdhsa_user_sgpr_count 2
  .amdhsa_user_sgpr_kernarg_segment_ptr 1
  .amdhsa_system_sgpr_workgroup_id_x 1
.end_amdhsa_kernel
"""
    return out

def finish(lines, cfg, head):
    body = pad_hazards(lines)
    if not cfg["pads"]:
        return [l for l in body if not l.startswith(";")]
    roles = ["h", "a"]
    def build(r, npads):
        tree = []
        def rec(lo, hi):
            if hi - lo == 1: tree.append(f"s_branch L_pad{r}{lo}"); return
            mid = (lo + hi) // 2
            tree.append(f"s_cmp_lt_u32 s{cfg.get('sW', 23)}, {mid}"); tree.append(f"s_cbranch_scc0 L_wt{r}{mid}")
            rec(lo, mid); tree.append(f"L_wt{r}{mid}:"); rec(mid, hi)
        sw = cfg.get('sW', 23)
        pre = [f"s_lshl2_add_u32 s{sw}, s53, s3", f"s_cmp_ge_u32 s{sw}, {npads}", f"s_cbranch_scc1 L_back{r}", "s_mov_b64 exec, 0"]
        rec(0, npads)
        return ["; NOPAD_ON"] + pre + tree + [f"L_back{r}:", "s_mov_b64 exec, -1", "; NOPAD_OFF"]
    npads = {"h": 16, "a": 16}
    step = cfg["padstep"]
    for _ in range(8):
        cur = list(body)
        for r in roles:
            i = cur.index(f"; WALK {r}"); cur = cur[:i] + build(r, npads[r]) + cur[i+1:]
        labs = [f"L_pad{r}{k}:" for r in roles for k in range(npads[r])]
        sz = sizes_of([l if not l.startswith(".") else "" for l in cur] + labs, head + "kstart:\n", "")[:len(cur)]
        out = []; off = 0; nxt = None; k = {"h": 0, "a": 0}; nop = False; role = None
        for l, s in zip(cur, sz):
            if l == "; NOPAD_ON": nop = True
            if l == "; NOPAD_OFF": nop = False
            if l.startswith("L_back"): role = l[6]; nxt = (off // step + 1) * step
            if l == "; WALKEND": role = None
            if role and s and off >= nxt and not nop:
                out.append(f"L_pad{role}{k[role]}:"); out.append(f"s_cbranch_execz L_back{role}"); off += 4; k[role] += 1
                nxt = (off // step + 1) * step
            out.append(l); off += s
        if all(k[r] <= npads[r] for r in roles) and sum(npads.values()) - sum(k.values()) <= 1: break
        npads = dict(k) if _ < 3 else {r: max(k[r], npads[r]) for r in roles}
    assert all(k[r] <= npads[r] for r in roles) and max(npads.values()) <= 64, (k, npads)
    for r in roles:
        i = out.index(f"L_back{r}:")
        out[i:i] = [f"L_pad{r}{j}:" for j in range(k[r], npads[r])]
    sys.stderr.write(f"code bytes {off}, pads {npads}\n")
    return [l for l in out if not l.startswith(";")]

if __name__ == "__main__":
    import chk, json
    kw = json.loads(sys.argv[2]) if len(sys.argv) > 2 else {}
    s = gen(**kw)
    open(sys.argv[1], "w").write(s)
    print(chk.check(s))
```

```python
import sys, struct
sys.path.insert(0, "work")
from asmlib import *
NAME = "parallel_sum__compressed_kv_cla__dense_activation_silu__decode"
def f2h(x): return hex(struct.unpack("<I", struct.pack("<f", x))[0])
def ar(a, n=1): return f"a{a}" if n == 1 else f"a[{a}:{a+n-1}]"

WS_EPOCH = 0; WS_ID = 0x1000; WS_GO = 0x8000; WS_S1 = 0x40000; S1_ALT = 0x20000; WS_S2 = 0x80000; WS_MA = 0xC0000
WS_S2L = 0x300000; WS_S3B = 0x100000; WS_S5 = 0x200000; WS_S3A = 0x400000; WS_TS = 0x900000; WS_SIZE = 0xA00000
RSZ = 39296; O_W1 = 0; O_W2 = 11520; O_UV = 21888; O_WO = 30080; O_WQ = O_WO
L_XN = 157184; L_HB = 159488; L_VB = 161024
L_QA = 131072; L_PB = 131072; L_MX = 131072 + 8192; L_FB = 131072 + 12288
LDS_BYTES = 163840

DEF = dict(ts=0, stop=99, pads=1, padstep=512, dbg=0, nalt=12, cs=33280, aw0=32, qa_at=4, go=0, go_at=16, vearly=1, wb=1, order="1,2,uv,o", hw=63, hbar=3, wukat=0, hmap=8, wukl=1, s1w=0, walkall=1, npk=999, relay=0, pre=1, nt="c", idw=0, gow=0, gobound=24, idlate=1)

def gen(**kw):
    cfg = dict(DEF); cfg.update(kw); assert not cfg["relay"]
    TS = cfg["ts"]; STOP = cfg["stop"]; CS = cfg["cs"]
    a = Asm()
    cur = [a]
    def e(s): cur[0](s)
    NT = {k: (" nt" if k in cfg["nt"].split(",") else "") for k in "c,q,k,1,2,v,o,x".split(",")}
    sX, sI, sH, sKQ, sTAG, sSPIN, sT0, sT1, sT2, sT3, sT4, sT5, sT6, sT7, sT8, sT9 = range(52, 68)
    sSP, sB = sH, sKQ
    sM0, sM1 = 48, 50
    sHI, sC0, sC1 = 100, 101, 22
    sWV = 3
    WS = 40
    frozen = set()
    def ts(i, force=False):
        if TS and (force or (cur_role[0], i) not in frozen): e(f"s_memrealtime s[{68+2*i}:{69+2*i}]")
    cur_role = ["h"]
    def probe(name, cnt=None):
        sl = cfg.get("probe", {}).get(name)
        if sl is None or not TS: return
        if cnt is None: ts(sl, True)
        else: e(f"s_waitcnt lgkmcnt(0)\ns_mul_i32 s{68+2*sl}, s{cnt}, 100\ns_add_u32 s{68+2*sl}, s{68+2*sl}, s68")
        frozen.add((cur_role[0], sl))
    def srd(d, p, size, add=None):
        if add is None: e(f"s_mov_b32 s{d}, s{p}\ns_mov_b32 s{d+1}, s{p+1}")
        else: e(f"s_add_u32 s{d}, s{p}, s{add}\ns_addc_u32 s{d+1}, s{p+1}, 0")
        e(f"s_mov_b32 s{d+2}, {hex(size)}\ns_mov_b32 s{d+3}, 0x20000")
    def setexec(m):
        lo = m & 0xffffffff; hi = m >> 32
        if m == (1 << 64) - 1: e("s_mov_b64 exec, -1")
        elif hi == 0: e(f"s_mov_b64 exec, {hex(lo)}" if lo < 0x80000000 else f"s_mov_b32 exec_lo, {hex(lo)}\ns_mov_b32 exec_hi, 0")
        elif hi == lo: e(f"s_mov_b32 exec_lo, {hex(lo)}\ns_mov_b32 exec_hi, exec_lo")
        else: e(f"s_mov_b32 exec_lo, {hex(lo)}\ns_mov_b32 exec_hi, {hex(hi)}")
    def setmask(s, m):
        lo = m & 0xffffffff; hi = m >> 32
        e(f"s_mov_b32 s{s}, {hex(lo)}")
        e(f"s_mov_b32 s{s+1}, s{s}" if hi == lo else f"s_mov_b32 s{s+1}, {hex(hi)}")
    rep16 = lambda m: m * 0x0001000100010001
    fails = []
    nopad_on = lambda: e("; NOPAD_ON")
    nopad_off = lambda: e("; NOPAD_OFF")
    def masked(m, txt):
        nopad_on(); setexec(m); e(txt); e("s_mov_b64 exec, -1"); nopad_off()
    v0, vG, vN, vL16, vTAG = 0, 1, 2, 3, 4
    def dpp(op, d, s0, s1, ctl, bank="0xf"): e(f"{op}_dpp v{d}, v{s0}, v{s1} {ctl} row_mask:0xf bank_mask:{bank}")
    def movdpp(d, s, ctl, bank="0xf"): e(f"v_mov_b32_dpp v{d}, v{s} {ctl} row_mask:0xf bank_mask:{bank}")
    QP1 = "quad_perm:[1,0,3,2]"; QP2 = "quad_perm:[2,3,0,1]"
    def R(x, n): return x if isinstance(x, str) else vr(x, n)
    def mfma32(d, A, B, C=None): e(f"v_mfma_f32_16x16x32_bf16 {vr(d,4)}, {R(A,4)}, {R(B,4)}, {vr(C,4) if C is not None else 0}")
    def mfma16(d, A, B, C=None): e(f"v_mfma_f32_16x16x16_bf16 {vr(d,4)}, {R(A,2)}, {R(B,2)}, {vr(C,4) if C is not None else 0}")
    def cvtpk(d, x, y): e(f"v_cvt_pk_bf16_f32 v{d}, v{x}, v{y}")
    def swap16(v, t, op): e(f"v_mov_b32 v{t}, v{v}\nv_permlane16_swap_b32 v{t}, v{v}\n{op} v{v}, v{v}, v{t}")
    def swap32(v, t, op): e(f"v_mov_b32 v{t}, v{v}\nv_permlane32_swap_b32 v{t}, v{v}\n{op} v{v}, v{v}, v{t}")
    def mktag():
        e(f"s_mul_i32 s{sTAG}, s{sTAG}, 1664525\ns_add_u32 s{sTAG}, s{sTAG}, 0x3c6ef35f\nv_mov_b32 v{vTAG}, s{sTAG}")

    cold = [None]
    MASKS = [4, 6, 8, 10, 12, 14, 16, 18, 20]
    def gather(items, code, post=None, extra=0, alt=None, altpub=None, bound=None):
        lc = a.lab("L_gc"); lr = a.lab("L_gr"); n = len(items)
        e(f"{lc}:")
        for i, (ld, r) in enumerate(items):
            m = MASKS[i]
            e(f"s_waitcnt vmcnt({n-1-i+extra})")
            e(f"v_cmp_ne_u32 s[{m}:{m+1}], s{sTAG}, v{r}")
            if post: post(i)
            if i == 1: e(f"s_or_b64 s[{sM1}:{sM1+1}], s[{MASKS[0]}:{MASKS[0]+1}], s[{m}:{m+1}]")
            elif i > 1: e(f"s_or_b64 s[{sM1}:{sM1+1}], s[{sM1}:{sM1+1}], s[{m}:{m+1}]")
        al = sM1 if n > 1 else MASKS[0]
        e(f"s_cmp_lg_u64 s[{al}:{al+1}], 0\ns_cbranch_scc1 {lr}")
        c = cold[0]
        c(f"{lr}:")
        if cfg["dbg"]:
            l = f"L_fail{code}"; fails.append(code)
        else: l = "L_end"
        if bound:
            lb = a.lab("L_gb"); c(f"s_sub_u32 s{sC1}, s{sC1}, 1\ns_cbranch_scc1 {lb}")
        else: c(f"s_sub_u32 s{sSPIN}, s{sSPIN}, 1\ns_cbranch_scc1 {l}")
        if TS and not alt and not bound: c(f"s_add_u32 s{sC1}, s{sC1}, 1")
        if alt:
            regs_, bit = alt
            c(f"s_add_u32 s{sC1}, s{sC1}, 1\ns_cmp_gt_u32 s{sC1}, {cfg['nalt']}\ns_cselect_b32 s{sC0}, {bit if isinstance(bit, str) else hex(bit)}, 0")
            for r in regs_: c(f"s_xor_b32 s{r}, s{r}, s{sC0}")
            if altpub:
                la = a.lab("L_ga"); m, txt = altpub
                c(f"s_cmp_lg_u32 s{sC1}, {cfg['nalt']-2}\ns_cbranch_scc1 {la}")
                sv = cur[0]; cur[0] = c; masked(m, txt); cur[0] = sv
                c(f"{la}:")
        c("; NOPAD_ON")
        for i, (ld, r) in enumerate(items):
            m = MASKS[i]; ls = a.lab("L_gs")
            if n > 1: c(f"s_mov_b64 exec, s[{m}:{m+1}]\ns_cbranch_execz {ls}")
            else: c(f"s_mov_b64 exec, s[{m}:{m+1}]")
            c(ld("sc1"))
            if n > 1: c(f"{ls}:")
        c("s_mov_b64 exec, -1")
        c("; NOPAD_OFF")
        c(f"s_waitcnt vmcnt(0)\ns_branch {lc}")
        if bound: e(f"{lb}:")
    def lane_tr(vr_, vcq):
        e(f"v_bfe_u32 v{vr_}, v0, 2, 2\nv_and_b32 v{vcq}, 3, v0")

    ts(0)
    e("s_cmp_ge_u32 s2, 256\ns_cbranch_scc1 L_end")
    e("s_load_dwordx16 s[4:19], s[0:1], 0\ns_load_dwordx8 s[20:27], s[0:1], 64")
    e(f"v_lshrrev_b32 v1, 6, v0\nv_and_b32 v0, 63, v0\nv_readfirstlane_b32 s3, v1")
    e(f"s_and_b32 s{sX}, s2, 7\ns_bfe_u32 s{sI}, s2, 0x40003\ns_mov_b32 s{sSPIN}, 0x40000\ns_mov_b32 s{sHI}, 0xffff0000")
    e(f"v_lshlrev_b32 v{vL16}, 4, v0\nv_lshrrev_b32 v{vG}, 4, v0\nv_and_b32 v{vN}, 15, v0")
    e("s_cmp_ge_u32 s2, 128\ns_cbranch_scc1 L_attn")

    cold[0] = Asm()
    sFS = sT9; sR = sT8
    e(f"s_lshr_b32 s{sH}, s{sI}, 2\n" + (f"s_lshl2_add_u32 s{sH}, s{sX}, s{sH}" if cfg["hmap"] == 4 else f"s_lshl3_add_u32 s{sH}, s{sH}, s{sX}") + f"\ns_and_b32 s{sKQ}, s{sI}, 3\ns_lshl4_add_u32 s{sFS}, s{sX}, s{sI}\ns_mul_i32 s{sR}, s3, {RSZ}")
    vXO, vW64, vWK = 5, 6, 7
    e(f"v_lshrrev_b32 v12, 5, v0\nv_and_b32 v13, 31, v0\nv_mul_u32_u24 v12, 0x480, v12\nv_mad_u32_u24 v{vXO}, v13, 36, v12")
    e(f"v_lshrrev_b32 v12, 2, v0\nv_lshlrev_b32 v{vW64}, 13, v12\nv_lshrrev_b32 v12, 4, v0\nv_and_b32 v12, 2, v12\nv_and_b32 v13, 3, v0\nv_xor_b32 v12, v12, v13\nv_lshl_add_u32 v{vW64}, v12, 4, v{vW64}")
    if cfg["wukl"]:
        e(f"v_xor_b32 v12, v{vN}, v{vG}\nv_lshlrev_b32 v12, 4, v12\nv_lshl_add_u32 v66, v{vG}, 13, v12\nv_lshl_add_u32 v70, v{vN}, 8, v12")
        for j in range(1, 4): e(f"v_xor_b32 v{66+j}, {64*j}, v66\nv_xor_b32 v{70+j}, {64*j}, v70")
        for j in range(4): e(f"v_add_u32 v{70+j}, s{sR}, v{70+j}")
    else: e(f"v_lshlrev_b32 v{vWK}, 13, v{vN}\nv_lshl_add_u32 v{vWK}, v{vG}, 4, v{vWK}")
    e(f"s_mul_i32 s{sT0}, s{sKQ}, {144*8192}\ns_lshl_b32 s{sT1}, s{sH}, 8\ns_add_u32 s{sT0}, s{sT0}, s{sT1}\ns_lshl_b32 s{sT2}, s3, 6\ns_add_u32 s{sT0}, s{sT0}, s{sT2}")
    e(f"s_lshl2_add_u32 s{sT2}, s{sKQ}, s3\ns_lshl_b32 s{sT2}, s{sT2}, 18\ns_add_u32 s{sT6}, s{sT1}, s{sT2}\ns_add_u32 s{sT7}, s{sT6}, {16*8192}")
    e(f"s_add_u32 s{sT3}, s{sR}, {O_WQ}")
    XB = 128
    for k in range(18): e(f"v_mov_b32 v{XB+k}, 0x3f803f80")
    PK = []
    sv_ = cur[0]; cur[0] = PK.append
    vTA0, vTA1, vTB0, vTB1, vXB = 8, 9, 10, 11, 12
    lane_tr(13, 14)
    e(f"v_lshlrev_b32 v14, 3, v14\nv_lshl_add_u32 v13, v13, 6, v14\nv_add_u32 v13, s{sR}, v13")
    e(f"v_lshl_add_u32 v{vTA0}, v{vG}, 9, v13\nv_and_b32 v14, 1, v{vG}\nv_lshl_add_u32 v{vTA0}, v14, 5, v{vTA0}\nv_xor_b32 v{vTA1}, 32, v{vTA0}")
    e(f"v_lshl_add_u32 v{vTB0}, v{vG}, 8, v13\nv_lshrrev_b32 v14, 1, v{vG}\nv_lshl_add_u32 v{vTB0}, v14, 5, v{vTB0}\nv_xor_b32 v{vTB1}, 32, v{vTB0}")
    e(f"v_and_b32 v14, 1, v{vN}\nv_mul_u32_u24 v14, 0x480, v14\nv_lshl_add_u32 v{vXB}, v{vG}, 4, v14\nv_lshl_add_u32 v15, v{vG}, 3, v14")
    e(f"s_mul_i32 s{sC0}, s{sKQ}, 288\ns_add_u32 s{sC0}, s{sC0}, s{sR}\nv_add_u32 v13, s{sC0}, v{vXB}\nv_add_u32 v14, s{sC0}, v15")
    e(f"s_add_u32 s{sC0}, s{sR}, {O_W2}\nv_add_u32 v112, s{sC0}, v{vXO}")
    e(f"v_and_b32 v30, 1, v{vN}\nv_lshlrev_b32 v64, 7, v30\nv_bfe_u32 v30, v{vN}, 1, 1\nv_lshl_add_u32 v30, v30, 2, v{vG}\nv_lshl_add_u32 v64, v30, 4, v64")
    e(f"s_lshl_b32 s{sT5}, s{sH}, 12\ns_add_u32 s{sT5}, s{sT5}, {WS_S1}\ns_lshl2_add_u32 s{sT4}, s3, s{sKQ}\ns_lshl_b32 s{sT4}, s{sT4}, 8\ns_add_u32 s{sT4}, s{sT4}, s{sT5}")
    e(f"v_and_b32 v30, 3, v{vN}\nv_lshlrev_b32 v65, 8, v30\nv_bfe_u32 v30, v{vN}, 2, 1\nv_lshl_add_u32 v65, v30, 7, v65\nv_lshl_add_u32 v65, v{vG}, 5, v65\nv_lshrrev_b32 v30, 3, v{vN}\nv_lshl_add_u32 v65, v30, 4, v65")
    e(f"v_bfe_u32 v30, v{vN}, 2, 1\nv_lshlrev_b32 v113, 16, v30\nv_and_b32 v30, 1, v{vN}\nv_lshl_add_u32 v30, v30, 2, v{vG}\nv_lshl_add_u32 v113, v30, 4, v113")
    e(f"s_lshl_b32 s98, s{sH}, 11\ns_lshl2_add_u32 s{sC0}, s{sKQ}, s3\ns_lshl_b32 s{sC0}, s{sC0}, 7\ns_add_u32 s98, s98, s{sC0}\ns_add_u32 s98, s98, {WS_S2}")
    cur[0] = sv_
    PK = [l for t in PK for l in t.split('\n')]
    npk = min(len(PK), cfg['npk'])
    for l in PK[:npk]: e(l)
    e("s_waitcnt lgkmcnt(0)")
    ts(1)
    e(f"s_load_dword s{sTAG}, s[26:27], 0")
    srd(28, 4, 2304)
    e("; PADSTART")
    XR = 80
    e(f"buffer_load_dwordx4 {vr(XR,4)}, v{vXO}, s[28:31], 0 offen\nbuffer_load_dwordx4 {vr(XR+4,4)}, v{vXO}, s[28:31], 0 offen offset:16\nbuffer_load_dword v{XR+8}, v{vXO}, s[28:31], 0 offen offset:32")
    srd(32, 8, 4718592); srd(36, 10, 4194304)
    if cfg["hbar"] & 1: e("s_barrier")
    for it in range(9):
        e(f"s_mov_b32 m0, s{sT3}" if it == 0 else f"s_add_u32 m0, m0, 0x400\ns_add_u32 s{sT0}, s{sT0}, {16*8192}")
        e(f"buffer_load_dwordx4 v{vW64}, s[32:35], s{sT0} offen{NT['q']} lds")
    WUKR = 224
    def wuk():
        if cfg["wukl"]:
            for j in range(8):
                e(f"s_add_u32 m0, s{sR}, {O_W1}" if j == 0 else f"s_add_u32 m0, m0, 0x400\ns_add_u32 s{sT6}, s{sT6}, {4*8192}")
                e(f"buffer_load_dwordx4 v{66+(j&3)}, s[36:39], s{sT6} offen{NT['k']} lds")
            return
        for T in range(2):
            for t in range(4): e(f"buffer_load_dwordx4 {vr(WUKR+16*T+4*t,4)}, v{vWK}, s[36:39], s{sT6+T} offen offset:{64*t}{NT['k']}")
    if cfg["hbar"] & 2: e("s_barrier")
    if cfg["wukat"] == 0: wuk()
    srd(WS, 26, WS_SIZE)
    srd(28, 18, 5308416); srd(32, 20, 5308416); srd(44, 14, 4718592)
    e(f"s_mov_b32 s96, s12\ns_mov_b32 s97, s13")
    if not cfg["walkall"]: e("; WALK h")
    for l in PK[npk:]: e(l)
    if cfg['relay']:
        e(f"s_lshl2_add_u32 s{sT2}, s{sI}, s3\ns_lshl_b32 s{sT2}, s{sT2}, 10\ns_lshr_b32 s{sT3}, s{sX}, 2\ns_lshl_b32 s{sT3}, s{sT3}, 16\ns_add_u32 s{sT3}, s{sT3}, s{sT2}\ns_add_u32 s{sC0}, s{sT3}, {WS_S2}")
        e(f"s_lshl_b32 s{sT3}, s{sX}, 16\ns_add_u32 s{sT3}, s{sT3}, s{sT2}\ns_add_u32 s{sT3}, s{sT3}, {WS_S2L}\ns_mov_b32 s98, s{sC0}\ns_mov_b32 s99, s{sT3}")
    VW1 = 16; VW2 = 21
    XF = 90; MU = 108; RS = 110
    e("s_waitcnt lgkmcnt(0)")
    mktag()
    e(f"v_not_b32 v118, v{vTAG}")
    e(f"s_waitcnt vmcnt({17 if cfg['wukat'] == 0 else 9})")
    ts(2)
    if cfg["pre"]:
        masked(rep16(0xF), f"buffer_store_dwordx4 v[116:119], v64, s[40:43], s{sT4} offen")
        if cfg["relay"]: e(f"buffer_store_dwordx4 v[116:119], v{vL16}, s[40:43], s99 offen")
    if cfg["wukat"] == 1: wuk()
    for k in range(0, 8, 2): e(f"ds_write2_b32 v112, v{XR+k}, v{XR+k+1} offset0:{k} offset1:{k+1}")
    e(f"ds_write_b32 v112, v{XR+8} offset:32")
    for k in range(9): e(f"v_lshlrev_b32 v{XF+2*k}, 16, v{XR+k}\nv_and_b32 v{XF+2*k+1}, s{sHI}, v{XR+k}")
    masked(rep16(0x0F0F), "\n".join([f"ds_read_b128 {vr(XB+4*st,4)}, v13 offset:{O_W2+64*st}" for st in range(4)] + [f"ds_read_b64 {vr(XB+16,2)}, v14 offset:{O_W2+256}"]))
    e(f"v_pk_add_f32 {vr(MU,2)}, {vr(XF,2)}, {vr(XF+2,2)}")
    for k in range(2, 9): e(f"v_pk_add_f32 {vr(MU,2)}, {vr(MU,2)}, {vr(XF+2*k,2)}")
    e(f"v_add_f32 v{MU}, v{MU}, v{MU+1}")
    def reduce32(v, t):
        for c in (QP1, QP2, "row_half_mirror", "row_mirror"): dpp("v_add_f32", v, v, v, c)
        swap16(v, t, "v_add_f32")
    def bfr(v): e(f"v_cvt_pk_bf16_f32 v{v}, v{v}, v{v}\nv_and_b32 v{v}, s{sHI}, v{v}")
    reduce32(MU, MU+1)
    e(f"v_mul_f32 v{MU}, {f2h(1/576)}, v{MU}")
    for k in range(9):
        e(f"v_pk_add_f32 v[30:31], {vr(XF+2*k,2)}, {vr(MU,2)} op_sel_hi:[1,0] neg_lo:[0,1] neg_hi:[0,1]")
        e(f"v_pk_mul_f32 {vr(RS,2)}, v[30:31], v[30:31]" if k == 0 else f"v_pk_fma_f32 {vr(RS,2)}, v[30:31], v[30:31], {vr(RS,2)}")
    e(f"v_add_f32 v{RS}, v{RS}, v{RS+1}")
    reduce32(RS, RS+1)
    e(f"v_mul_f32 v{RS}, {f2h(1/576)}, v{RS}"); bfr(RS)
    e(f"v_add_f32 v{RS}, 0x3727c5ac, v{RS}"); bfr(RS)
    e(f"v_sqrt_f32 v{RS}, v{RS}"); bfr(MU); bfr(RS)
    e(f"v_rcp_f32 v{RS}, v{RS}")
    setmask(sM0, rep16(0xAAAA))
    NM, RB = 114, 120
    e(f"v_mov_b32 v30, v{MU}\nv_mov_b32 v31, v{MU}\nv_permlane32_swap_b32 v30, v31\nv_cndmask_b32 v{NM}, -v30, -v31, s[{sM0}:{sM0+1}]")
    e(f"v_mov_b32 v30, v{RS}\nv_mov_b32 v31, v{RS}\nv_permlane32_swap_b32 v30, v31\nv_cndmask_b32 v{RB}, v30, v31, s[{sM0}:{sM0+1}]")
    def xnorm():
        for k in range(9):
            e(f"v_pk_add_f32 {vr(XF+2*k,2)}, {vr(XF+2*k,2)}, {vr(MU,2)} op_sel_hi:[1,0] neg_lo:[0,1] neg_hi:[0,1]")
            cvtpk(XR+k, XF+2*k, XF+2*k+1)
        for k in range(9): e(f"v_lshlrev_b32 v{XF+2*k}, 16, v{XR+k}\nv_and_b32 v{XF+2*k+1}, s{sHI}, v{XR+k}")
        for k in range(9):
            e(f"v_pk_mul_f32 {vr(XF+2*k,2)}, {vr(XF+2*k,2)}, {vr(RS,2)} op_sel_hi:[1,0]")
            cvtpk(XR+k, XF+2*k, XF+2*k+1)
            if k & 1: e(f"ds_write2_b32 v{vXO}, v{XR+k-1}, v{XR+k} offset0:{k-1} offset1:{k}")
        e(f"ds_write_b32 v{vXO}, v{XR+8} offset:32")
    setmask(sM0, rep16(0xCCCC))
    probe("stats")
    if cfg["wukat"] == 3: wuk()
    e(f"s_waitcnt vmcnt({8 if cfg['wukat'] != 2 else 0})")
    ts(3)
    if cfg["wukat"] == 2: wuk()
    e(f"v_mov_b32 v78, v{vTAG}\nv_mov_b32 v79, v{vTAG}\ns_xor_b32 s{sT7}, s{sT4}, {hex(S1_ALT)}")
    QA_ = 148; ACC = 48
    for st in range(4):
        for T in range(2):
            for hf in range(2): e(f"ds_read_b64_tr_b16 {vr(QA_+8*st+4*T+2*hf,2)}, v{vTA0+T} offset:{O_WQ+st*2048+hf*256}")
    for T in range(2): e(f"ds_read_b64_tr_b16 {vr(QA_+32+2*T,2)}, v{vTB0+T} offset:{O_WQ+8192}")
    for st in range(4):
        e(f"s_waitcnt lgkmcnt({14-4*st})")
        for T in range(2): mfma32(ACC+4*T, QA_+8*st+4*T, XB+4*st, ACC+4*T if st else None)
    e("s_waitcnt lgkmcnt(0)")
    for T in range(2): mfma16(ACC+4*T, QA_+32+2*T, XB+16, ACC+4*T)
    for r in range(4): e(f"v_cndmask_b32 v{56+r}, v{ACC+r}, v{ACC+4+r}, s[{sM0}:{sM0+1}]")
    for r in range(4): e(f"v_fmac_f32_dpp v{56+r}, v{56+r}, v{NM} row_shl:4 row_mask:0xf bank_mask:0xf")
    for r in (0, 2): e(f"v_pk_mul_f32 {vr(56+r,2)}, {vr(56+r,2)}, {vr(RB,2)} op_sel_hi:[1,0]")
    cvtpk(76, 56, 57); cvtpk(77, 58, 59)
    s1alt = (rep16(0xF), f"buffer_store_dwordx4 v[76:79], v64, s[40:43], s{sT7} offen sc1")
    masked(rep16(0xF), f"buffer_store_dwordx4 v[76:79], v64, s[40:43], s{sT4} offen")
    ts(4)
    if STOP <= 1: e("s_branch L_done")
    G = 32
    it1 = [((lambda fl, t=t: f"buffer_load_dwordx4 {vr(G+4*t,4)}, v65, s[40:43], s{sT5} offen offset:{1024*t} {fl}"), G+4*t+2) for t in range(4)]
    if cfg["s1w"]: e("s_waitcnt vmcnt(0)")
    for x in it1: e(x[0]("sc1"))
    setmask(sM0, rep16(0xAAAA))
    e(f"s_mov_b32 s{sC1}, 0\ns_mov_b32 s{sT2}, {f2h(128**-0.5*1.4426950408889634)}")
    if cfg["wukl"]:
        e("s_waitcnt vmcnt(4)")
        probe("wuk")
        for t in range(4):
            for T in range(2): e(f"ds_read_b128 {vr(WUKR+16*T+4*t,4)}, v{70+t} offset:{O_W1+4096*T}")
    gather(it1, 1, alt=([sT5], S1_ALT), altpub=s1alt)
    ts(5)
    probe("s1cnt", sC1)
    def merge_u(G):
        for t in range(4):
            movdpp(G+4*t+2, G+4*t, "row_ror:8"); movdpp(G+4*t+3, G+4*t+1, "row_ror:8")
    merge_u(G)
    if cfg["wukl"]: e("s_waitcnt lgkmcnt(0)")
    for t in range(4):
        for T in range(2): mfma32(ACC+4*T, WUKR+16*T+4*t, G+4*t, ACC+4*T if t else None)
    def quadsel(D, pre=None):
        mk = f"s[{sM0}:{sM0+1}]"
        if pre: pre()
        for r in range(4): e(f"v_cndmask_b32 v{D+r}, v{ACC+r}, v{ACC+4+r}, {mk}\nv_cndmask_b32 v{ACC+r}, v{ACC+4+r}, v{ACC+r}, {mk}")
        for r in range(4): dpp("v_add_f32", D+r, ACC+r, D+r, QP1)
        for r in range(4): dpp("v_add_f32", D+r, D+r, D+r, QP2)
    quadsel(60)
    for r in range(4): e(f"v_mul_f32 v{60+r}, s{sT2}, v{60+r}")
    cvtpk(56, 60, 61); cvtpk(57, 62, 63)
    e(f"v_mov_b32 v58, v{vTAG}\nv_mov_b32 v59, v{vTAG}")
    masked(rep16(0x33), f"buffer_store_dwordx4 v[56:59], v113, s[40:43], s98 offen sc1")
    ts(6)
    masked(*s1alt)
    e(f"s_mul_i32 s{sC0}, s3, 288\ns_add_u32 s{sC0}, s{sC0}, {L_XN}\nv_add_u32 v{vXB}, s{sC0}, v{vXB}\nv_add_u32 v15, s{sC0}, v15\nv_add_u32 v{vXO}, {L_XN}, v{vXO}")
    xnorm()
    for j in range(5):
        e(f"v_add_u32 v30, {64*j}, v0\nv_mul_u32_u24 v31, 0xcccd, v30\nv_lshrrev_b32 v31, 18, v31\nv_mul_u32_u24 v{VW1+j}, 5, v31\nv_sub_u32 v30, v30, v{VW1+j}\nv_mul_u32_u24 v31, 0x2400, v31\nv_lshl_add_u32 v{VW1+j}, v30, 4, v31")
    for j in range(9):
        e(f"v_add_u32 v30, {hex(64*j)}, v0\nv_mul_u32_u24 v31, 0xe39, v30\nv_lshrrev_b32 v31, 16, v31\nv_mul_u32_u24 v{VW2+j}, 18, v31\nv_sub_u32 v30, v30, v{VW2+j}\nv_mul_u32_u24 v31, 0x480, v31\nv_lshl_add_u32 v{VW2+j}, v30, 4, v31")
    if STOP <= 2: e("s_branch L_done")
    if cfg["relay"]:
        itr = [((lambda fl: f"buffer_load_dwordx4 v[32:35], v{vL16}, s[40:43], s98 offen {fl}"), 34)]
        e(itr[0][0]("sc1")); gather(itr, 8)
        e(f"buffer_store_dwordx4 v[32:35], v{vL16}, s[40:43], s99 offen")
    if cfg["go"]:
        if cfg["go"] == 1:
            e(f"s_lshl_b32 s{sT0}, s{sFS}, 7\ns_add_u32 s{sT0}, s{sT0}, {WS_GO}")
            itg = [((lambda fl: f"buffer_load_dwordx4 v[32:35], off, s[40:43], s{sT0} {fl}"), 34)]
        else:
            e(f"s_lshl_b32 s{sT0}, s{sX}, 11\ns_add_u32 s{sT0}, s{sT0}, {WS_GO}\nv_lshlrev_b32 v36, 7, v{vN}")
            itg = [((lambda fl: f"buffer_load_dwordx4 v[32:35], v36, s[40:43], s{sT0} offen {fl}"), 34)]
        e(f"s_mov_b32 s{sC1}, {cfg['gobound']}")
        e(itg[0][0]("sc1")); gather(itg, 2, bound=True)
    ts(7)
    srd(36, 96, 4194304)
    ops = {}
    o = []
    for it in range(12):
        pre = f"s_add_u32 m0, s{sR}, {O_W1}\ns_mul_i32 s{sT0}, s3, {144*9216}\ns_mul_i32 s{sT1}, s{sFS}, 72\ns_andn2_b32 s{sT1}, s{sT1}, 15\ns_add_u32 s{sT0}, s{sT0}, s{sT1}\n" if it == 0 else "s_add_u32 m0, m0, 0x400\n"
        if it in (5, 10): pre += f"s_add_u32 s{sT0}, s{sT0}, {64*9216}\n"
        ld = f"buffer_load_dwordx4 v{VW1+it%5}, s[28:31], s{sT0} offen{NT['1']} lds"
        if it == 11: ld = "; NOPAD_ON\ns_mov_b64 exec, 0xffff\n" + ld + "\ns_mov_b64 exec, -1\n; NOPAD_OFF"
        o.append(pre + ld)
    ops["1"] = o; o = []
    for it in range(11):
        pre = f"s_add_u32 m0, s{sR}, {O_W2}\ns_mul_i32 s{sT0}, s{sFS}, {36*1152}\ns_mul_i32 s{sT1}, s3, 288\ns_add_u32 s{sT0}, s{sT0}, s{sT1}\n" if it == 0 else "s_add_u32 m0, m0, 0x400\n"
        if it == 9: pre += f"s_add_u32 s{sT0}, s{sT0}, {32*1152}\n"
        ld = f"buffer_load_dwordx4 v{VW2+it%9}, s[32:35], s{sT0} offen{NT['2']} lds"
        if it == 10: ld = "; NOPAD_ON\ns_mov_b64 exec, 0xff\n" + ld + "\ns_mov_b64 exec, -1\n; NOPAD_OFF"
        o.append(pre + ld)
    ops["2"] = o; o = []
    for it in range(8):
        pre = f"s_add_u32 m0, s{sR}, {O_UV}\ns_lshl_b32 s{sT0}, s3, 20\ns_lshl2_add_u32 s{sT1}, s{sH}, s{sKQ}\ns_lshl_b32 s{sT1}, s{sT1}, 6\ns_add_u32 s{sT0}, s{sT0}, s{sT1}\n" if it == 0 else f"s_add_u32 m0, m0, 0x400\ns_add_u32 s{sT0}, s{sT0}, {16*8192}\n"
        o.append(pre + f"buffer_load_dwordx4 v{vW64}, s[36:39], s{sT0} offen{NT['v']} lds")
    ops["uv"] = o; o = []
    for it in range(9):
        pre = f"s_add_u32 m0, s{sR}, {O_WO}\ns_lshl2_add_u32 s{sT0}, s{sH}, s{sKQ}\ns_mul_i32 s{sT0}, s{sT0}, {32*1152}\ns_mul_i32 s{sT1}, s3, 288\ns_add_u32 s{sT0}, s{sT0}, s{sT1}\n" if it == 0 else "s_add_u32 m0, m0, 0x400\n"
        o.append(pre + f"buffer_load_dwordx4 v{VW2+it}, s[44:47], s{sT0} offen{NT['o']} lds")
    ops["o"] = o
    order = cfg["order"].split(",")
    after = {}; tot = sum(len(ops[k]) for k in order); c = 0
    for k in order:
        for x in ops[k]: e(x)
        c += len(ops[k]); after[k] = tot - c
    vF0, vF2, vFB0, vFB2, vW, vW2, vHW, vHR = 16, 17, 18, 19, 20, 21, 22, 23
    lane_tr(30, 31)
    e(f"s_and_b32 s{sT0}, s{sFS}, 1\ns_lshl3_add_u32 s{sT0}, s{sT0}, s{sR}")
    e(f"v_lshl_add_u32 v24, v{vG}, 3, v30\nv_mul_u32_u24 v24, 80, v24\nv_add_u32 v{vF2}, s{sT0}, v24\nv_lshl_add_u32 v{vF0}, v31, 3, v{vF2}")
    e(f"v_lshl_add_u32 v24, v{vG}, 2, v30\nv_mul_u32_u24 v25, 80, v24\nv_add_u32 v{vFB2}, s{sT0}, v25\nv_lshl_add_u32 v{vFB0}, v31, 3, v{vFB2}")
    e(f"v_mul_u32_u24 v24, 0x120, v24\nv_lshl_add_u32 v24, v31, 3, v24\nv_add_u32 v{vW}, s{sR}, v24\nv_mul_u32_u24 v24, 0x120, v30\nv_lshl_add_u32 v24, v31, 3, v24\nv_add_u32 v{vW2}, s{sR}, v24")
    e(f"v_and_b32 v24, 1, v{vN}\nv_lshlrev_b32 v24, 6, v24\nv_lshl_add_u32 v24, v{vG}, 4, v24\nv_bfe_u32 v25, v{vN}, 1, 2\nv_mul_u32_u24 v26, 0x180, v25\nv_add_u32 v{vHR}, v24, v26\nv_add_u32 v{vHR}, {L_HB}, v{vHR}")
    e(f"s_mul_i32 s{sT0}, s3, 384\ns_add_u32 s{sT0}, s{sT0}, {L_HB}\nv_add_u32 v{vHW}, s{sT0}, v24")
    vVR, vVW = 25, 24
    e(f"v_lshlrev_b32 v25, 8, v25\nv_and_b32 v26, 1, v{vN}\nv_lshl_add_u32 v25, v26, 7, v25\nv_lshl_add_u32 v25, v{vG}, 4, v25\nv_add_u32 v{vVR}, {L_VB}, v25")
    e(f"v_bfe_u32 v26, v{vN}, 2, 1\nv_lshl_add_u32 v24, v26, 7, v24\ns_lshl_b32 s{sT0}, s3, 8\ns_add_u32 s{sT0}, s{sT0}, {L_VB}\nv_add_u32 v{vVW}, s{sT0}, v24")
    e(f"v_and_b32 v26, 7, v{vN}\nv_lshlrev_b32 v28, 4, v26\nv_lshlrev_b32 v26, 9, v26\nv_lshl_add_u32 v26, v{vG}, 5, v26\nv_lshrrev_b32 v29, 3, v{vN}\nv_lshl_add_u32 v26, v29, 4, v26")
    e(f"s_lshl_b32 s{sT1}, s{sH}, 14\ns_lshl_b32 s{sT2}, s3, 12\ns_add_u32 s{sT1}, s{sT1}, s{sT2}\ns_add_u32 s{sT1}, s{sT1}, {WS_S3B}")
    e(f"v_lshl_add_u32 v27, v29, 18, v28\nv_lshl_add_u32 v27, v{vG}, 16, v27\nv_add_u32 v28, 0x80000, v28")
    e(f"s_lshl_b32 s{sT2}, s3, 14\ns_lshl_b32 s{sT3}, s{sFS}, 7\ns_add_u32 s{sT2}, s{sT2}, s{sT3}\ns_add_u32 s{sT2}, s{sT2}, {WS_S5}")
    OA = 64
    def ffn1():
        e(f"s_waitcnt vmcnt({after['1']})")
        ts(8)
        F = 128
        for st in range(5):
            b = F + 16*st
            if st < 4:
                e(f"ds_read_b128 {vr(b+12,4)}, v{vXB} offset:{64*st}")
                for T in range(3):
                    for hf in range(2): e(f"ds_read_b64_tr_b16 {vr(b+4*T+2*hf,2)}, v{vF0 if T < 2 else vF2} offset:{O_W1+st*2560+hf*320+T*32}")
            else:
                e(f"ds_read_b64 {vr(b+6,2)}, v15 offset:256")
                for T in range(3): e(f"ds_read_b64_tr_b16 {vr(b+2*T,2)}, v{vFB0 if T < 2 else vFB2} offset:{O_W1+128*80+T*32}")
        for st in range(5):
            b = F + 16*st
            e(f"s_waitcnt lgkmcnt({min(15, 7*(3-st)+4) if st < 4 else 0})")
            for T in range(3):
                if st < 4: mfma32(ACC+4*T, b+4*T, b+12, ACC+4*T if st else None)
                else: mfma16(ACC+4*T, b+2*T, b+6, ACC+4*T)
        masked(rep16(3), "\n".join(f"ds_write_b128 v{vHW}, {vr(ACC+4*T,4)} offset:{128*T}" for T in range(3)))
        e("s_waitcnt lgkmcnt(0)\ns_barrier")
        for T in range(3): e(f"ds_read_b128 {vr(ACC+4*T,4)}, v{vHR} offset:{128*T}")
        e("s_waitcnt lgkmcnt(0)")
        for c in (QP2, "row_ror:4"):
            for r in range(12): dpp("v_add_f32", ACC+r, ACC+r, ACC+r, c)
        H = 100
        for r in range(6): cvtpk(32+r, ACC+2*r, ACC+2*r+1)
        for r in range(6): e(f"v_lshlrev_b32 v{ACC+2*r}, 16, v{32+r}\nv_and_b32 v{ACC+2*r+1}, s{sHI}, v{32+r}")
        e(f"s_mov_b32 s{sC0}, 0xbfb8aa3b")
        for r in range(12): e(f"v_mul_f32 v{32+r}, s{sC0}, v{ACC+r}")
        for r in range(12): e(f"v_exp_f32 v{32+r}, v{32+r}")
        for r in range(12): e(f"v_add_f32 v{32+r}, 1.0, v{32+r}")
        for r in range(12): e(f"v_rcp_f32 v{32+r}, v{32+r}")
        for r in range(12): e(f"v_mul_f32 v{ACC+r}, v{ACC+r}, v{32+r}")
        for r in range(6): cvtpk(H+r, ACC+2*r, ACC+2*r+1)
        setmask(sM0, 0xFFFF)
        for r in (4, 5): e(f"v_cndmask_b32 v{H+r}, 0, v{H+r}, s[{sM0}:{sM0+1}]")
    def ffn2(first):
        H = 100; F = 128
        e(f"s_waitcnt vmcnt({after['2']})")
        ts(9)
        for tt in range(9):
            for T in range(2): e(f"ds_read_b64_tr_b16 {vr(F+6*tt+2*T,2)}, v{vW} offset:{O_W2+tt*32+T*4608}")
            e(f"ds_read_b64_tr_b16 {vr(F+6*tt+4,2)}, v{vW2} offset:{O_W2+32*288+tt*32}")
        for tt in range(9):
            e(f"s_waitcnt lgkmcnt({min(15, 3*(8-tt))})")
            mfma32(OA+4*tt, H, F+6*tt, None if first else OA+4*tt)
        for tt in range(9): mfma16(OA+4*tt, H+4, F+6*tt+4, OA+4*tt)
        ts(10)
    UV = 220; WOF = 184
    def attn_tail(first):
        if STOP <= 3: e("s_waitcnt vmcnt(0)\ns_branch L_done")
        e(f"s_waitcnt vmcnt({min(after['uv'], after['o'])})")
        ts(11)
        it3 = [((lambda fl, t=t: f"buffer_load_dwordx4 {vr(G+4*t,4)}, v26, s[40:43], s{sT1} offen offset:{128*t} {fl}"), G+4*t+2) for t in range(4)]
        for x in it3: e(x[0]("sc1"))
        for st in range(4):
            for T in range(2):
                for hf in range(2): e(f"ds_read_b64_tr_b16 {vr(UV+8*st+4*T+2*hf,2)}, v{vTA0+T} offset:{O_UV+st*2048+hf*256}")
        for tt in range(9):
            for T in range(2): e(f"ds_read_b64_tr_b16 {vr(WOF+4*tt+2*T,2)}, v{vW} offset:{O_WO+tt*32+T*4608}")
        setmask(sM0, rep16(0xAAAA))
        gather(it3, 3)
        ts(12)
        e(f"v_mov_b32 v60, v{G+3}")
        movdpp(61, G+3, "row_ror:8")
        merge_u(G)
        e("s_waitcnt lgkmcnt(0)")
        for t in range(4):
            for T in range(2): mfma32(ACC+4*T, UV+8*t+4*T, G+4*t, ACC+4*T if t else None)
        dpp("v_max_f32", 62, 60, 60, QP1); dpp("v_max_f32", 62, 62, 62, QP2)
        e("v_sub_f32 v60, v60, v62\nv_exp_f32 v60, v60\nv_mul_f32 v61, v60, v61")
        dpp("v_add_f32", 61, 61, 61, QP1); dpp("v_add_f32", 61, 61, 61, QP2)
        e("v_rcp_f32 v61, v61\nv_mul_f32 v60, v60, v61")
        def pre():
            for r in range(8): e(f"v_mul_f32 v{ACC+r}, v{ACC+r}, v60")
        quadsel(56, pre)
        masked(rep16(0x33), f"ds_write_b128 v{vVW}, v[56:59]")
        e("s_waitcnt lgkmcnt(0)\ns_barrier")
        for T in range(2): e(f"ds_read_b128 {vr(ACC+4*T,4)}, v{vVR} offset:{64*T}")
        e("s_waitcnt lgkmcnt(0)")
        for c in (QP2, "row_ror:4"):
            for r in range(8): dpp("v_add_f32", ACC+r, ACC+r, ACC+r, c)
        for r in range(4): cvtpk(56+r, ACC+2*r, ACC+2*r+1)
        ts(13)
        for tt in range(9): mfma32(OA+4*tt, 56, WOF+4*tt, None if first else OA+4*tt)
    seq = ["1", "2", "t"] if order.index("2") < max(order.index("uv"), order.index("o")) else ["1", "t", "2"]
    if order.index("1") > max(order.index("uv"), order.index("o")): seq = ["t", "1", "2"]
    seq = cfg.get("seq", ",".join(seq)).split(",")
    first = True
    for k in seq:
        if k == "1": ffn1()
        elif k == "2": ffn2(first); first = False
        else: attn_tail(first); first = False
    e(f"v_mov_b32 v34, v{vTAG}\nv_mov_b32 v35, v{vTAG}\nv_mov_b32 v38, v{vTAG}\nv_mov_b32 v39, v{vTAG}")
    nopad_on()
    for g in range(4):
        setexec(0xFFFF << (16*g))
        cvtpk(32, OA+8*g, OA+8*g+1); cvtpk(33, OA+8*g+4, OA+8*g+5)
    e("s_mov_b64 exec, -1")
    nopad_off()
    e(f"buffer_store_dwordx4 v[32:35], v27, s[40:43], s{sT2} offen sc1")
    cvtpk(36, OA+32, OA+33)
    movdpp(37, 36, "row_ror:8")
    masked(0xFF, f"buffer_store_dwordx4 v[36:39], v28, s[40:43], s{sT2} offen sc1")
    ts(14)
    e("s_branch L_done")
    a.L += cold[0].L
    e("; WALKEND")

    cold[0] = Asm()
    e("L_attn:")
    cur_role[0] = "a"
    e(f"s_lshr_b32 s{sB}, s{sX}, 2\ns_lshl4_add_u32 s{sT0}, s{sX}, s{sI}\ns_lshl_b32 s{sT0}, s{sT0}, 17\ns_lshl_b32 s{sT1}, s3, 15")
    VC = 8
    for q in range(8):
        f = ((q & 7) << 1) | ((q >> 2) & 1)
        e(f"v_xor_b32 v{VC+q}, {hex(16*f)}, v{vL16}" if f else f"v_mov_b32 v{VC+q}, v{vL16}")
    e(f"s_getreg_b32 s{sT9}, hwreg(HW_REG_XCC_ID, 0, 4)")
    e("s_waitcnt lgkmcnt(0)")
    ts(1)
    e(f"s_load_dword s{sTAG}, s[26:27], 0")
    srd(28, 6, 131072, add=sT0)
    def dma(lo, hi):
        for row in range(lo, hi):
            if row % 4 == 0: e(f"s_add_u32 m0, s{sT1}, {row*1024}")
            e(f"buffer_load_dwordx4 v{VC+(row&7)}, s[28:31], m0 offen offset:{(row&3)*1024}{NT['c']} lds")
    AW0 = cfg["aw0"]
    if not cfg.get("adelay"): dma(0, AW0)
    srd(WS, 26, WS_SIZE); srd(32, 4, 2304); srd(44, 22, 2304)
    if cfg["walkall"]: srd(36, 4, 2304)
    e("; WALK a")
    e(f"v_and_b32 v5, 7, v{vN}\nv_lshlrev_b32 v5, 1, v5\nv_bfe_u32 v6, v{vN}, 2, 1\nv_or_b32 v5, v5, v6\nv_xor_b32 v5, v5, v{vG}\nv_lshlrev_b32 v5, 4, v5")
    e(f"v_lshl_add_u32 v5, v{vN}, 10, v5\nv_add_u32 v16, s{sT1}, v5\nv_xor_b32 v17, 64, v16\nv_xor_b32 v18, 0x80, v16\nv_xor_b32 v19, 0xc0, v16")
    e(f"v_xor_b32 v5, v{vG}, v{vN}\nv_lshlrev_b32 v5, 4, v5\nv_lshl_add_u32 v5, v{vN}, 10, v5\nv_add_u32 v20, {L_QA}, v5\nv_xor_b32 v21, 64, v20\nv_xor_b32 v22, 0x80, v20\nv_xor_b32 v23, 0xc0, v20")
    e(f"s_lshl_b32 s{sT2}, s3, 2\nv_lshrrev_b32 v5, 1, v0\nv_xor_b32 v5, s{sT2}, v5\nv_lshlrev_b32 v5, 4, v5\nv_and_b32 v6, 1, v0\nv_lshl_add_u32 v5, v6, 3, v5\ns_lshl_b32 s{sT2}, s3, 12\ns_add_u32 s{sT2}, s{sT2}, {L_QA}\nv_add_u32 v24, s{sT2}, v5")
    for ee in range(1, 4): e(f"v_xor_b32 v{24+ee}, {16*ee}, v24\nv_add_u32 v{24+ee}, {hex(1024*ee)}, v{24+ee}")
    VA = 96
    e(f"v_bfe_u32 v5, v0, 2, 2\nv_and_b32 v6, 1, v{vG}\nv_lshl_add_u32 v6, v6, 2, v5\nv_lshlrev_b32 v7, 1, v6\nv_lshrrev_b32 v6, 2, v6\nv_or_b32 v7, v7, v6")
    e(f"v_bfe_u32 v6, v0, 1, 1\nv_xor_b32 v7, v7, v6\nv_lshlrev_b32 v7, 4, v7\nv_and_b32 v6, 1, v0\nv_lshl_add_u32 v7, v6, 3, v7")
    e(f"v_lshl_add_u32 v5, v{vG}, 2, v5\nv_lshl_add_u32 v7, v5, 10, v7\ns_lshl_b32 s{sT2}, s3, 8\nv_add_u32 v{VA}, s{sT2}, v7")
    for ct in range(1, 8): e(f"v_xor_b32 v{VA+ct}, {hex(32*ct)}, v{VA}")
    for ct in range(8): e(f"v_add_u32 v{VA+8+ct}, 0x10000, v{VA+ct}")
    e(f"s_lshl_b32 s{sT2}, s{sB}, 16\ns_add_u32 s{sT2}, s{sT2}, {WS_S2}")
    if cfg["relay"]: e(f"s_lshl_b32 s{sT3}, s{sX}, 16\ns_add_u32 s{sT3}, s{sT3}, {WS_S2L}\ns_xor_b32 s98, s{sT2}, s{sT3}\ns_mov_b32 s{sT2}, s{sT3}")
    e(f"s_lshl_b32 s{sT3}, s3, 13\ns_add_u32 s{sT2}, s{sT2}, s{sT3}\ns_add_u32 s{sT3}, s{sT2}, 0x1000\ns_add_u32 s{sT4}, s{sT2}, 0x8000\ns_add_u32 s{sT5}, s{sT2}, 0x9000")
    e(f"v_lshlrev_b32 v5, 7, v{vN}\ns_lshl_b32 s{sT6}, s{sX}, 11\ns_add_u32 s{sT6}, s{sT6}, {WS_ID}")
    if cfg.get("adelay"): dma(0, AW0)
    e("s_waitcnt lgkmcnt(0)")
    mktag()
    def id_pub():
        lid = a.lab("L_noid")
        e(f"s_cmp_lg_u32 s3, {cfg['idw']}\ns_cbranch_scc1 {lid}")
        e(f"s_lshl_b32 s{sT7}, s{sI}, 7\ns_add_u32 s{sT7}, s{sT7}, s{sT6}")
        masked(0xFF, f"buffer_store_dwordx4 v[28:31], v{vL16}, s[40:43], s{sT7} offen sc1")
        e(f"{lid}:")
    e(f"v_mov_b32 v28, s{sT9}\nv_mov_b32 v29, s{sT9}\nv_mov_b32 v30, v{vTAG}\nv_mov_b32 v31, v{vTAG}")
    if not cfg["idlate"]: id_pub()
    issued = AW0
    def wait_landed(n):
        e(f"s_waitcnt vmcnt({issued-n+wl_extra[0]})")
    wl_extra = [0]
    if cfg.get("slide"):
        W, st, N = cfg["slide"]
        n = st
        while n <= N:
            wait_landed(n)
            if n == st and cfg.get("tsfirst"): ts(2)
            k = 32 if n + st > N else min(32, n + W); dma(issued, k); issued = k; n += st
    elif AW0 < 32:
        step = cfg.get("astep", 4); first_n = cfg.get("afirst", 4)
        n = first_n
        while issued < 32:
            wait_landed(n); k = min(32, issued + step); dma(issued, k); issued = k; n += step
    def go_pub(data='v[28:31]'):
        l = a.lab("L_nogo")
        e(f"s_cmp_lg_u32 s3, {cfg['gow']}\ns_cbranch_scc1 {l}")
        e(f"s_lshl4_add_u32 s{sT7}, s{sX}, s{sI}\ns_lshl_b32 s{sT7}, s{sT7}, 7\ns_add_u32 s{sT7}, s{sT7}, {WS_GO}")
        masked(0xFF, f"buffer_store_dwordx4 {data}, v{vL16}, s[40:43], s{sT7} offen")
        e(f"{l}:")
    if cfg["idlate"]: id_pub()
    e(f"v_not_b32 v50, v{vTAG}")
    if cfg["go"] and cfg["pre"]: go_pub("v[48:51]")
    if cfg["pre"]:
        e(f"s_lshl2_add_u32 s{sT7}, s{sX}, s3\ns_lshl4_add_u32 s{sT7}, s{sT7}, s{sI}\ns_lshl_b32 s{sT7}, s{sT7}, 9\ns_add_u32 s{sT7}, s{sT7}, {WS_MA}")
        masked(0xFFFFFFFF, f"buffer_store_dwordx4 v[48:51], v{vL16}, s[40:43], s{sT7} offen")
    KR = 128; VR = 128
    def kread(T, t): return f"ds_read_b128 {ar(KR+64*T+4*t,4)}, v{16+(t&3)} offset:{T*16384+(t>>2)*256}"
    def vread(ct, kw, T): return f"ds_read_b64_tr_b16 {vr(VR+16*ct+4*kw+2*T,2)}, v{VA+8*(kw>>1)+ct} offset:{(kw&1)*32768+T*16384}"
    wait_landed(16)
    if not cfg.get("tsfirst"): ts(2)
    for t in range(16): e(kread(0, t))
    if cfg["go"] and cfg["go_at"] <= 16: go_pub()
    if cfg["vearly"]:
        e("s_barrier")
        for kw in range(4):
            for ct in range(8): e(vread(ct, kw, 0))
    if cfg["go"] and 16 < cfg["go_at"] <= 32 - cfg["qa_at"]:
        wait_landed(cfg["go_at"]); go_pub()
    if STOP <= 2:
        e("s_waitcnt vmcnt(0)\ns_branch L_done")
    GA = 32
    def qld(HT, k):
        i = 8*HT + k; ee = k >> 1; hf = k & 1
        return ((lambda fl: f"buffer_load_dwordx4 {vr(GA+4*i,4)}, v{vL16}, s[40:43], s{sT2+2*HT+(ee>>1)} offen offset:{(ee&1)*2048+hf*1024} {fl}"), GA+4*i+2)
    idit = ((lambda fl: f"buffer_load_dwordx4 v[112:115], v5, s[40:43], s{sT6} offen {fl}"), 114)
    itq = [[qld(HT, k) for k in range(8)] for HT in range(2)]
    itq[1].append(idit)
    wait_landed(32 - cfg["qa_at"])
    ts(3)
    for HT in range(2):
        for x in itq[HT]: e(x[0](""))
    wl_extra[0] = 17
    wait_landed(32)
    ts(4)
    for t in range(16): e(kread(1, t))
    if cfg["go"] and cfg["go_at"] > 32 - cfg["qa_at"]: go_pub()
    S = 32
    def qapost(HT): return lambda k: (e(f"ds_write_b64 v{24+(k>>1)}, {vr(GA+4*(8*HT+k),2)} offset:{HT*16384+(k&1)*512}") if k < 8 else None)
    def qaread(HT, t): return f"ds_read_b128 {ar(64*HT+4*t,4)}, v{20+(t&3)} offset:{HT*16384+(t>>2)*256}"
    vr1 = [vread(ct, kw, 1) for kw in range(4) for ct in range(8)]
    if not cfg["vearly"]: vr1 = [vread(ct, kw, 0) for kw in range(4) for ct in range(8)] + vr1
    e(f"s_mov_b32 s{sC1}, 0")
    gather(itq[0], 4, post=qapost(0), extra=9, alt=([sT2, sT3], "s98") if cfg["relay"] else None)
    ts(5)
    probe("qa0cnt", sC1)
    e("s_waitcnt lgkmcnt(0)\ns_barrier")
    for t in range(16): e(qaread(0, t))
    for t in range(16):
        e(f"s_waitcnt lgkmcnt({15-t})")
        for T in range(2): mfma32(S+4*T, ar(KR+64*T+4*t,4), ar(4*t,4), S+4*T if t else None)
    e(f"s_mov_b32 s{sC1}, 0")
    gather(itq[1], 5, post=qapost(1), alt=([sT4, sT5], "s98") if cfg["relay"] else None)
    ts(6)
    probe("qa1cnt", sC1)
    e(f"v_cmp_ne_u32 vcc, s{sT9}, v112\ns_mov_b64 s[{sM0}:{sM0+1}], vcc")
    sSAME = sT9
    e(f"s_cmp_eq_u64 s[{sM0}:{sM0+1}], 0\ns_cselect_b32 s{sSAME}, 1, 0")
    e("s_waitcnt lgkmcnt(0)\ns_barrier")
    for t in range(16): e(qaread(1, t))
    nv = len(vr1); per = nv // 16
    def sm_max(HT):
        s = S + 8*HT; m = 56 + HT
        o = Asm()
        o(f"v_max3_f32 v{m}, v{s}, v{s+1}, v{s+2}\nv_max3_f32 v58, v{s+3}, v{s+4}, v{s+5}\nv_max3_f32 v{m}, v{m}, v{s+6}, v{s+7}\nv_max_f32 v{m}, v{m}, v58")
        o(f"v_mov_b32 v58, v{m}\nv_permlane16_swap_b32 v58, v{m}\nv_max_f32 v{m}, v{m}, v58\nv_mov_b32 v58, v{m}\nv_permlane32_swap_b32 v58, v{m}\nv_max_f32 v{m}, v{m}, v58\nv_ceil_f32 v{m}, v{m}")
        for r in range(8): o(f"v_sub_f32 v{s+r}, v{s+r}, v{m}")
        for r in range(8): o(f"v_exp_f32 v{s+r}, v{s+r}")
        for r in range(4): o(f"v_cvt_pk_bf16_f32 v{48+4*HT+r}, v{s+2*r}, v{s+2*r+1}")
        return o.L
    sm0 = sm_max(0); k = 0
    for t in range(16):
        e(f"s_waitcnt lgkmcnt({15-t})" if t < 15 else "s_waitcnt lgkmcnt(0)")
        for T in range(2):
            mfma32(S+8+4*T, ar(KR+64*T+4*t,4), ar(64+4*t,4), S+8+4*T if t else None)
            for x in sm0[k:k+1]: e(x)
            k += 1
        if t == 15: e("s_barrier")
    for x in sm0[k:]: e(x)
    ts(7)
    e(f"s_lshl_b32 s{sT2}, s3, 11\ns_add_u32 s{sT2}, s{sT2}, {L_PB}\nv_add_u32 v5, s{sT2}, v{vL16}\nds_write_b128 v5, v[48:51]")
    e(f"s_lshl_b32 s{sT2}, s3, 2\nv_lshlrev_b32 v6, 5, v{vN}\nv_add_u32 v6, {L_MX}, v6\nv_add_u32 v7, s{sT2}, v6\nds_write_b32 v7, v56")
    for x in interleave(sm_max(1), vr1, start=0, every=1, per=(nv + 30) // 31): e(x)
    e(f"ds_write_b128 v5, v[52:55] offset:1024\nds_write_b32 v7, v57 offset:16")
    e(f"v_add_u32 v5, {L_PB}, v{vL16}")
    e(f"v_bfe_u32 v30, v{vN}, 1, 2\nv_mul_u32_u24 v30, {hex(CS)}, v30\nv_and_b32 v31, 1, v{vN}\nv_lshl_add_u32 v30, v31, 8, v30\nv_lshrrev_b32 v31, 3, v{vN}\nv_lshl_add_u32 v30, v31, 6, v30\nv_lshl_add_u32 v30, v{vG}, 4, v30\nv_add_u32 v31, {hex(4*CS)}, v30")
    e(f"s_mul_i32 s{sT5}, s{sX}, {16*CS}\ns_lshl_b32 s{sT3}, s3, 13\ns_add_u32 s{sT5}, s{sT5}, s{sT3}\ns_add_u32 s{sT5}, s{sT5}, {WS_S3A}\ns_lshl_b32 s{sT4}, s{sI}, 9\ns_add_u32 s{sT2}, s{sT5}, s{sT4}\ns_add_u32 s{sT3}, s{sT2}, {8*CS}")
    e(f"s_lshl2_add_u32 s{sT6}, s{sX}, s3\ns_lshl_b32 s{sT6}, s{sT6}, 13\ns_add_u32 s{sT6}, s{sT6}, {WS_MA}\ns_add_u32 s{sT4}, s{sT4}, s{sT6}")
    e(f"s_mov_b32 s{sC0}, 0x800080")
    e("s_waitcnt lgkmcnt(0)\ns_barrier")
    ts(8)
    PF = 96
    e("ds_read_b128 v[56:59], v6\nds_read_b128 v[60:63], v6 offset:16")
    for HT in range(2):
        for kw in range(4): e(f"ds_read_b128 {vr(PF+16*HT+4*kw,4)}, v5 offset:{kw*2048+HT*1024}")
    for r in range(4): e(f"v_mov_b32 v{24+r}, 0x3f803f80")
    e("s_waitcnt lgkmcnt(8)")
    for HT in range(2):
        m = 56 + 4*HT; M = 28 + HT
        e(f"v_max3_f32 v{M}, v{m}, v{m+1}, v{m+2}\nv_max_f32 v{M}, v{M}, v{m+3}")
        for kw in range(4): e(f"v_sub_f32 v{m+kw}, v{M}, v{m+kw}")
        for kw in range(4): e(f"v_cvt_u32_f32 v{m+kw}, v{m+kw}")
        for kw in range(4): e(f"v_min_u32 v{m+kw}, 0xff, v{m+kw}")
        for kw in range(4): e(f"v_mul_u32_u24 v{m+kw}, s{sC0}, v{m+kw}")
    def padj(HT, kw): return [f"v_pk_sub_u16 v{PF+16*HT+4*kw+r}, v{PF+16*HT+4*kw+r}, v{56+4*HT+kw} clamp" for r in range(4)]
    for kw in range(4):
        e(f"s_waitcnt lgkmcnt({7-kw})")
        for x in padj(0, kw): e(x)
    e("s_waitcnt lgkmcnt(0)")
    for kw in range(4):
        for x in padj(1, kw): e(x)
    O = 32
    def pv(fl):
        batches = [(q, HT) for q in range(2) for HT in range(2)]
        def pack(q, HT):
            A = O + 32*HT + 16*q
            o = [f"v_cvt_pk_bf16_f32 v{A+k}, v{A+2*k}, v{A+2*k+1}" for k in range(8)]
            X = A; Y = A + 4; Z = A + 8
            o += [f"v_mov_b32 v{Z+r}, v{X+r}" for r in range(4)]
            o += [f"v_mov_b32_dpp v{X+r}, v{Y+r} row_ror:8 row_mask:0xf bank_mask:0xc" for r in range(4)]
            o += [f"buffer_store_dwordx4 {vr(X,4)}, v30, s[40:43], s{sT2+HT} offen offset:{128*q} {fl}"]
            o += [f"v_mov_b32_dpp v{Y+r}, v{Z+r} row_ror:8 row_mask:0xf bank_mask:0x3" for r in range(4)]
            o += [f"buffer_store_dwordx4 {vr(Y,4)}, v31, s[40:43], s{sT2+HT} offen offset:{128*q} {fl}"]
            return o
        prev = None
        for bi in range(5):
            mf = []
            if bi < 4:
                q, HT = batches[bi]
                for kw in range(4):
                    for cc in range(4):
                        ct = 4*q + cc; acc = O + 32*HT + 4*ct
                        mf.append(f"v_mfma_f32_16x16x32_bf16 {vr(acc,4)}, {vr(VR+16*ct+4*kw,4)}, {vr(PF+16*HT+4*kw,4)}, {vr(acc,4) if kw else 0}")
            else:
                for kw in range(4):
                    for HT in range(2): mf.append(f"v_mfma_f32_16x16x32_bf16 {vr(16+4*HT,4)}, v[24:27], {vr(PF+16*HT+4*kw,4)}, {vr(16+4*HT,4) if kw else 0}")
            p = pack(*batches[bi-1]) if bi else []
            k = 0
            for i, x in enumerate(mf):
                e(x)
                if i >= 2:
                    n = 2 if bi < 4 else 4
                    for y in p[k:k+n]: e(y)
                    k += n
            for y in p[k:]: e(y)
        ts(9)
        setmask(sM0, 0x0000FFFF0000FFFF)
        e(f"v_cndmask_b32 v8, v29, v28, s[{sM0}:{sM0+1}]\nv_cndmask_b32 v9, v20, v16, s[{sM0}:{sM0+1}]\nv_mov_b32 v10, v{vTAG}\nv_mov_b32 v11, v{vTAG}")
        e("s_waitcnt vmcnt(0)")
        ts(10)
        masked(0xFFFFFFFF, f"buffer_store_dwordx4 v[8:11], v{vL16}, s[40:43], s{sT4} offen {fl}")
    e(f"s_cmp_eq_u32 s{sSAME}, 0\ns_cbranch_scc1 L_pv_far")
    pv("")
    e("L_pv_done:")
    sv = cur[0]; cur[0] = far = Asm(); e("L_pv_far:"); pv("sc1"); e("s_branch L_pv_done"); cur[0] = sv
    if STOP <= 3: e("s_branch L_done")
    e(f"v_and_b32 v5, 3, v{vN}\nv_lshl_add_u32 v5, v5, 2, v{vG}\nv_lshlrev_b32 v5, 9, v5\nv_lshrrev_b32 v6, 3, v{vN}\nv_lshl_add_u32 v5, v6, 4, v5")
    e(f"s_lshl_b32 s{sT2}, s{sI}, 5\ns_add_u32 s{sT6}, s{sT6}, s{sT2}")
    itm = [((lambda fl: f"buffer_load_dwordx4 v[32:35], v5, s[40:43], s{sT6} offen {fl}"), 34)]
    e(itm[0][0]("sc1"))
    e(f"v_and_b32 v7, 7, v{vN}\nv_lshlrev_b32 v7, 4, v7\nv_lshl_add_u32 v7, v6, 8, v7\nv_lshl_add_u32 v7, v{vG}, 9, v7")
    e(f"s_mul_i32 s{sT2}, s{sI}, {CS}\ns_add_u32 s{sT2}, s{sT2}, s{sT5}\ns_add_u32 s{sT3}, s{sT2}, 0x1000")
    MK = 112; AM = 96; PAY = 64
    e(f"v_and_b32 v8, 1, v{vN}\nv_lshlrev_b32 v8, 4, v8\nv_mov_b32 v9, 0xffff\nv_lshlrev_b32 v8, v8, v9\nv_bfe_u32 v9, v{vN}, 1, 2")
    for r in range(4): e(f"v_cmp_eq_u32 vcc, {r}, v9\nv_cndmask_b32 v{MK+r}, 0, v8, vcc")
    e(f"v_lshrrev_b32 v9, 1, v{vG}\nv_lshlrev_b32 v8, 4, v9\nv_bfe_u32 v9, v{vN}, 2, 1\nv_lshl_add_u32 v8, v9, 3, v8\nv_and_b32 v9, 1, v{vG}\nv_lshl_add_u32 v8, v9, 2, v8\nv_and_b32 v9, 3, v{vN}\nv_add_u32 v8, v8, v9\nv_lshlrev_b32 v8, 4, v8\nv_lshl_add_u32 v8, v6, 14, v8")
    e(f"s_lshl_b32 s{sT4}, s{sI}, 15\ns_lshl_b32 s{sT7}, s3, 12\ns_add_u32 s{sT4}, s{sT4}, s{sT7}\ns_lshl_b32 s{sT7}, s{sX}, 9\ns_add_u32 s{sT4}, s{sT4}, s{sT7}\ns_add_u32 s{sT4}, s{sT4}, {WS_S3B}")
    setmask(sM0, rep16(0xAAAA))
    gather(itm, 6)
    ts(11)
    for pq in range(4):
        for q in range(2): e(f"buffer_load_dwordx4 {vr(PAY+8*pq+4*q,4)}, v7, s[40:43], s{sT2+(pq>>1)} offen offset:{(pq&1)*2048+q*128} sc1")
    dpp("v_max_f32", 36, 32, 32, QP1); dpp("v_max_f32", 36, 36, 36, QP2)
    swap16(36, 37, "v_max_f32"); swap32(36, 37, "v_max_f32")
    e("v_sub_f32 v37, v32, v36\nv_exp_f32 v37, v37\nv_mul_f32 v38, v37, v33")
    cvtpk(37, 37, 37)
    for pq in range(4):
        for r in range(4): e(f"v_and_b32_dpp v{AM+4*pq+r}, v37, v{MK+r} quad_perm:[{pq},{pq},{pq},{pq}] row_mask:0xf bank_mask:0xf")
    dpp("v_add_f32", 38, 38, 38, QP1); dpp("v_add_f32", 38, 38, 38, QP2)
    swap16(38, 39, "v_add_f32"); swap32(38, 39, "v_add_f32")
    e(f"v_cndmask_b32 v51, v36, v38, s[{sM0}:{sM0+1}]\nv_mov_b32 v50, v{vTAG}")
    for pq in range(4):
        for q in range(2):
            e(f"s_waitcnt vmcnt({7-2*pq-q})")
            mfma32(40+4*q, AM+4*pq, PAY+8*pq+4*q, 40+4*q if pq else None)
    ts(12)
    cvtpk(48, 40, 41); cvtpk(49, 42, 43); cvtpk(52, 44, 45); cvtpk(53, 46, 47)
    e("v_permlane32_swap_b32 v48, v52\nv_permlane32_swap_b32 v49, v53")
    movdpp(48, 52, "quad_perm:[0,1,2,3]", "0xc"); movdpp(49, 53, "quad_perm:[0,1,2,3]", "0xc")
    e(f"buffer_store_dwordx4 v[48:51], v8, s[40:43], s{sT4} offen sc1")
    ts(13)
    if STOP <= 4: e("s_branch L_done")
    if cfg["wb"]:
        e(f"s_or_b32 s{sT2}, s{sI}, s3\ns_cmp_lg_u32 s{sT2}, 0\ns_cbranch_scc1 L_nowb\nbuffer_wbl2 sc1\ns_branch L_done\nL_nowb:")
    e(f"s_cmp_lt_u32 s{sI}, 11\ns_cbranch_scc1 L_done")
    e(f"s_sub_u32 s{sT1}, s{sI}, 11\ns_lshl3_add_u32 s{sT1}, s{sT1}, s{sX}\ns_cmp_ge_u32 s{sT1}, 36\ns_cbranch_scc1 L_done")
    e(f"s_lshl_b32 s{sT2}, s{sT1}, 14\ns_lshl_b32 s{sT3}, s3, 12\ns_add_u32 s{sT2}, s{sT2}, s{sT3}\ns_add_u32 s{sT2}, s{sT2}, {WS_S5}")
    it5 = [((lambda fl, k=k: f"buffer_load_dwordx4 {vr(64+4*k,4)}, v{vL16}, s[40:43], s{sT2} offen offset:{1024*k} {fl}"), 64+4*k+2) for k in range(4)]
    e(f"s_and_b32 s{sT3}, s{sT1}, 3\ns_mul_i32 s{sT3}, s{sT3}, 144\ns_bfe_u32 s{sT4}, s{sT1}, 0x20002\ns_lshl_b32 s{sT4}, s{sT4}, 5\ns_lshr_b32 s{sT5}, s{sT1}, 4\ns_lshl3_add_u32 s{sT4}, s{sT5}, s{sT4}")
    e(f"s_cmp_ge_u32 s{sT1}, 32\ns_cselect_b32 s{sT4}, 128, s{sT4}\ns_cselect_b32 s{sT5}, 16, 32\ns_add_u32 s{sT3}, s{sT3}, s{sT4}\ns_lshl_b32 s{sT3}, s{sT3}, 1")
    e(f"v_and_b32 v6, 7, v0\nv_lshlrev_b32 v5, 1, v6\nv_bfe_u32 v7, v0, 3, 1\nv_mul_u32_u24 v8, 0x480, v7\nv_add_u32 v5, v5, v8\nv_bfe_u32 v8, v0, 4, 1\nv_mul_u32_u24 v9, s{sT5}, v8\nv_add_u32 v5, v5, v9")
    e(f"buffer_load_ushort v31, v5, s[32:35], s{sT3} offen")
    for x in it5: e(x[0]("sc1"))
    e(f"v_lshlrev_b32 v6, 4, v6\nv_lshl_add_u32 v8, v8, 1, v7\nv_lshl_add_u32 v6, v8, 2, v6\nv_add_u32 v6, {L_FB}, v6\ns_lshl_b32 s{sT4}, s3, 7\ns_add_u32 s{sT4}, s{sT4}, {L_FB}\nv_add_u32 v7, s{sT4}, v{vL16}")
    e(f"v_and_b32 v8, 1, v{vN}\nv_lshlrev_b32 v8, 4, v8\nv_mov_b32 v9, 0x3f80\nv_lshlrev_b32 v8, v8, v9\nv_bfe_u32 v9, v{vN}, 1, 1\nv_cmp_eq_u32 vcc, 0, v9\nv_cndmask_b32 v10, 0, v8, vcc\nv_cndmask_b32 v11, v8, 0, vcc")
    gather(it5, 7, post=lambda k: mfma16(40, 10, 64+4*k, 40 if k else None))
    ts(14)
    for r in range(4): dpp("v_add_f32", 40+r, 40+r, 40+r, "row_ror:8")
    masked(0xFF, "ds_write_b128 v7, v[40:43]")
    e("s_waitcnt lgkmcnt(0)\ns_barrier\ns_cmp_lg_u32 s3, 0\ns_cbranch_scc1 L_done")
    for w in range(4): e(f"ds_read_b32 v{40+w}, v6 offset:{128*w}")
    e("v_lshlrev_b32 v31, 16, v31\ns_waitcnt lgkmcnt(0)\nv_add_f32 v40, v40, v41\nv_add_f32 v42, v42, v43\nv_add_f32 v40, v40, v42\nv_add_f32 v40, v40, v31")
    cvtpk(40, 40, 40)
    nopad_on()
    setexec(0xFFFFFFFF)
    e(f"buffer_store_short v40, v5, s[44:47], s{sT3} offen")
    e(f"s_cmp_lg_u32 s{sT1}, 0\ns_cbranch_scc1 L_done")
    e("s_mov_b64 exec, 1")
    e(f"buffer_store_dword v{vTAG}, off, s[40:43], 0 sc1")
    nopad_off()
    e("s_branch L_done")
    a.L += cold[0].L
    e("; WALKEND")
    a.L += far.L
    e("L_done:")
    if cfg.get("amp"):
        wg, wv, i0, i1, K = cfg["amp"]
        e(f"s_cmp_lg_u32 s2, {wg}\ns_cbranch_scc1 L_amp_no\ns_cmp_lg_u32 s3, {wv}\ns_cbranch_scc1 L_amp_no")
        e(f"s_waitcnt lgkmcnt(0)\ns_memrealtime s[6:7]\ns_waitcnt lgkmcnt(0)")
        if i1 == 15: e(f"s_sub_u32 s4, s6, s{68+2*i0}")
        else: e(f"s_sub_u32 s4, s{68+2*i1}, s{68+2*i0}")
        e(f"s_mul_i32 s4, s4, {K}\ns_min_u32 s4, s4, 100000\nL_amp:\ns_memrealtime s[8:9]\ns_waitcnt lgkmcnt(0)\ns_sub_u32 s5, s8, s6\ns_cmp_lt_u32 s5, s4\ns_cbranch_scc1 L_amp\nL_amp_no:")
    if TS == 1:
        e("s_mov_b64 exec, -1\ns_waitcnt lgkmcnt(0)")
        e(f"s_lshl2_add_u32 s4, s2, s3\ns_lshl_b32 s4, s4, 6\ns_add_u32 s4, s4, {WS_TS}\ns_memrealtime s[6:7]\nv_lshlrev_b32 v1, 2, v0\nv_mov_b32 v2, 0")
        for i in range(15): e(f"v_writelane_b32 v2, s{68+2*i}, {i}")
        e("s_waitcnt lgkmcnt(0)\nv_writelane_b32 v2, s6, 15")
        e(f"s_mov_b64 exec, 0xffff\nbuffer_store_dword v2, v1, s[40:43], s4 offen")
    e("L_end:\ns_endpgm")
    for c in sorted(set(fails)):
        e(f"L_fail{c}:\ns_movk_i32 s4, {c}\ns_branch L_fail")
    if fails:
        e("L_fail:\ns_mov_b64 exec, 1\ns_mov_b32 s28, s24\ns_mov_b32 s29, s25\ns_mov_b32 s30, 256\ns_mov_b32 s31, 0x20000\ns_lshl_b32 s5, s4, 2\nv_mov_b32 v1, 1\nv_mov_b32 v2, s5\nbuffer_atomic_add v1, v2, s[28:31], 0 offen\ns_endpgm")

    lines = a.L
    head = '.amdgcn_target "amdgcn-amd-amdhsa--gfx950"\n.text\n'
    lines = finish(lines, cfg, head)
    hdr = open("cdna_kernels/" + NAME + ".s.ref").read().split("; @launch")[0]
    out = hdr + f"; @launch grid=(256,1,1) block=(256,1,1) lds={LDS_BYTES}\n" + head
    out += f".globl {NAME}_kernel\n.p2align 12\n.type {NAME}_kernel,@function\n{NAME}_kernel:\n" + "\n".join(lines) + "\n"
    out += f""".section .rodata,"a"
.p2align 6
.amdhsa_kernel {NAME}_kernel
  .amdhsa_next_free_vgpr 512
  .amdhsa_next_free_sgpr 102
  .amdhsa_accum_offset 256
  .amdhsa_group_segment_fixed_size 0
  .amdhsa_kernarg_size 96
  .amdhsa_user_sgpr_count 2
  .amdhsa_user_sgpr_kernarg_segment_ptr 1
  .amdhsa_system_sgpr_workgroup_id_x 1
.end_amdhsa_kernel
"""
    return out

def finish(lines, cfg, head):
    body = pad_hazards(lines)
    if not cfg["pads"]:
        return [l for l in body if not l.startswith(";")]
    wall = cfg["walkall"]
    roles = ["a"] if wall else ["h", "a"]
    def build(r, npads):
        tree = []
        def rec(lo, hi):
            if hi - lo == 1: tree.append(f"s_branch L_pad{r}{lo}"); return
            mid = (lo + hi) // 2
            tree.append(f"s_cmp_lt_u32 s{cfg.get('sW', 23)}, {mid}"); tree.append(f"s_cbranch_scc0 L_wt{r}{mid}")
            rec(lo, mid); tree.append(f"L_wt{r}{mid}:"); rec(mid, hi)
        sw = cfg.get('sW', 23)
        pre = [f"s_lshl2_add_u32 s{sw}, s53, s3", f"s_cmp_ge_u32 s{sw}, {npads}", f"s_cbranch_scc1 L_back{r}", "s_mov_b64 exec, 0"]
        rec(0, npads)
        return ["; NOPAD_ON"] + pre + tree + [f"L_back{r}:", "s_mov_b64 exec, -1", "; NOPAD_OFF"]
    npads = {r: 16 for r in roles}
    step = cfg["padstep"]
    for _ in range(8):
        cur = list(body)
        for r in roles:
            i = cur.index(f"; WALK {r}"); cur = cur[:i] + build(r, npads[r]) + cur[i+1:]
        labs = [f"L_pad{r}{k}:" for r in roles for k in range(npads[r])]
        sz = sizes_of([l if not l.startswith(".") else "" for l in cur] + labs, head + "kstart:\n", "")[:len(cur)]
        out = []; off = 0; nxt = None; k = {r: 0 for r in roles}; nop = False; role = None
        for l, s in zip(cur, sz):
            if l == "; NOPAD_ON": nop = True
            if l == "; NOPAD_OFF": nop = False
            if l.startswith("L_back"): role = l[6]; nxt = (off // step + 1) * step
            if l == "; WALKEND": role = None
            if wall and l == "; PADSTART": role = "a"; nxt = (off // step + 1) * step
            if role and s and off >= nxt and not nop:
                out.append(f"L_pad{role}{k[role]}:"); out.append(f"s_cbranch_execz L_back{role}"); off += 4; k[role] += 1
                nxt = (off // step + 1) * step
            out.append(l); off += s
        if all(k[r] <= npads[r] for r in roles) and sum(npads.values()) - sum(k.values()) <= 1: break
        npads = dict(k) if _ < 3 else {r: max(k[r], npads[r]) for r in roles}
    assert all(k[r] <= npads[r] for r in roles) and max(npads.values()) <= 64, (k, npads)
    for r in roles:
        i = out.index(f"L_back{r}:")
        out[i:i] = [f"L_pad{r}{j}:" for j in range(k[r], npads[r])]
    sys.stderr.write(f"code bytes {off}, pads {npads}\n")
    return [l for l in out if not l.startswith(";")]

if __name__ == "__main__":
    import chk, json
    kw = json.loads(sys.argv[2]) if len(sys.argv) > 2 else {}
    s = gen(**kw)
    open(sys.argv[1], "w").write(s)
    print(chk.check(s))
```
